```python
import torch

def _softmax(x, axis=-1):
    return torch.softmax(x, dim=axis)

def _gelu(x):
    return torch.nn.functional.gelu(x, approximate='tanh')

def _silu(x):
    return torch.nn.functional.silu(x)

def _sigmoid(x):
    return torch.sigmoid(x)

def _layernorm(x, axis=-1, eps=1e-05):
    m = x.mean(dim=axis, keepdim=True)
    v = x.var(dim=axis, keepdim=True, unbiased=False)
    return (x - m) / torch.sqrt(v + eps)

def _scatter_add(tgt, idx, src, axis=0):
    return tgt.clone().index_add_(axis, idx, src)

def _segment_sum(src, seg, n):
    out = torch.zeros((n,) + src.shape[1:], dtype=src.dtype)
    return out.index_add_(0, seg, src)

def _pad(x, pw):
    flat = tuple((v for pair in reversed(pw) for v in pair))
    return torch.nn.functional.pad(x, flat)
kernel_name = 'parallel_sum__memory_aug_recurrent_mem_tr__dense_activation_silu__prompt'

def setup_inputs():

    _w = lambda a: (lambda t: t.to(torch.bfloat16) if t.is_floating_point() else t)(torch.as_tensor(a))

    def _A_setup():
        B, S, Dm = (1, 2048, 448)
        H, Dh = (16, 256)
        M, seg = (8, 32)
        seg = min(seg, S)
        S = S // seg * seg
        return {'x': _w((lambda *s: torch.randn(*s, dtype=torch.bfloat16) * 0.05)(B, S, Dm)), 'mem0': _w((lambda *s: torch.randn(*s, dtype=torch.bfloat16) * 0.2)(B, M, Dm)), 'Wq': _w((lambda *s: torch.randn(*s, dtype=torch.bfloat16) * 1.6)(Dm, H, Dh) * Dm ** (-0.5)), 'Wk': _w((lambda *s: torch.randn(*s, dtype=torch.bfloat16) * 1.6)(Dm, H, Dh) * Dm ** (-0.5)), 'Wv': _w((lambda *s: torch.randn(*s, dtype=torch.bfloat16) * 0.2)(Dm, H, Dh) * Dm ** (-0.5)), 'Wo': _w((lambda *s: torch.randn(*s, dtype=torch.bfloat16) * 0.2)(H, Dh, Dm) * (H * Dh) ** (-0.5)), 'seg_len': seg}
    _A_in = _A_setup()

    def _B_setup():
        B, S, D, F = (1, 2048, 448, 1792)
        return {'x': _w((lambda *s: torch.randn(*s, dtype=torch.bfloat16) * 0.05)(B, S, D)), 'w1': _w((lambda *s: torch.randn(*s, dtype=torch.bfloat16) * 0.8)(D, F) * D ** (-0.5)), 'w2': _w((lambda *s: torch.randn(*s, dtype=torch.bfloat16) * 0.1)(F, D) * F ** (-0.5))}
    _B_in = _B_setup()
    return {'A_x': _A_in['x'], 'A_mem0': _A_in['mem0'], 'A_Wq': _A_in['Wq'], 'A_Wk': _A_in['Wk'], 'A_Wv': _A_in['Wv'], 'A_Wo': _A_in['Wo'], 'A_seg_len': _A_in['seg_len'], 'B_x': _B_in['x'], 'B_w1': _B_in['w1'], 'B_w2': _B_in['w2']}

def reference(A_x, A_mem0, A_Wq, A_Wk, A_Wv, A_Wo, A_seg_len, B_x, B_w1, B_w2):

    def _A_ref(x, mem0, Wq, Wk, Wv, Wo, seg_len):
        B, S, Dm = x.shape
        H, Dh = (Wq.shape[1], Wq.shape[2])
        M = mem0.shape[1]
        scale = Dh ** (-0.5)
        n_seg = S // seg_len
        L = M + seg_len
        idx = torch.arange(L)
        mask = (idx[:, None] < M) | (idx[:, None] >= idx[None, :])
        mem = mem0
        outs = []
        for s in range(n_seg):
            xs = x[:, s * seg_len:(s + 1) * seg_len, :].clone()
            h = torch.concatenate([mem, xs], axis=1)
            q = torch.einsum('btd,dhe->bhte', h, Wq)
            k = torch.einsum('btd,dhe->bhte', h, Wk)
            v = torch.einsum('btd,dhe->bhte', h, Wv)
            scores = torch.einsum('bhqe,bhke->bhqk', q, k) * scale
            scores = torch.where(mask[None, None], scores, -1000000000.0)
            p = _softmax(scores, axis=-1)
            o = torch.einsum('bhqk,bhke->bhqe', p, v)
            o = torch.einsum('bhte,hed->btd', o, Wo)
            mem = o[:, :M, :].clone()
            outs.append(o[:, M:, :])
        return torch.concatenate(outs, axis=1)

    def _B_ref(x, w1, w2):
        h = torch.einsum('bsd,df->bsf', x, w1)
        h = _silu(h)
        out = torch.einsum('bsf,fd->bsd', h, w2)
        return out
    x = A_x
    xn = _layernorm(x, axis=-1)
    return x + _A_ref(xn, A_mem0, A_Wq, A_Wk, A_Wv, A_Wo, A_seg_len) + _B_ref(xn, B_w1, B_w2)
```

```python
import re

def _regs(tok):
    tok = tok.strip()
    tok = tok.lstrip('-')
    if tok.startswith('abs(') or tok.startswith('|'):
        tok = tok.replace('abs(', '').replace(')', '').replace('|', '')
    m = re.fullmatch(r'([vas])\[(\d+):(\d+)\]', tok)
    if m:
        return {f'{m.group(1)}{i}' for i in range(int(m.group(2)), int(m.group(3)) + 1)}
    m = re.fullmatch(r'([vas])(\d+)', tok)
    if m:
        return {tok}
    if tok in ('vcc', 'vcc_lo', 'vcc_hi'):
        return {'vcc'}
    if tok in ('exec', 'exec_lo', 'exec_hi'):
        return {'exec'}
    if tok == 'm0':
        return {'m0'}
    return set()

TRANS = ('v_exp_f32', 'v_log_f32', 'v_rcp_f32', 'v_rsq_f32', 'v_sqrt_f32', 'v_sin_f32', 'v_cos_f32')

class Ins:
    def __init__(self, text):
        self.text = text
        t = text.split(';')[0].strip()
        self.label = t.endswith(':')
        self.directive = t.startswith('.')
        self.empty = (t == '')
        self.kind = None
        self.w = set(); self.r = set(); self.rc = set(); self.rab = set()
        self.states = 1
        self.target = None
        if self.label or self.directive or self.empty:
            self.states = 0
            return
        parts = t.split(None, 1)
        op = parts[0]
        self.op = op
        rest = parts[1] if len(parts) > 1 else ''
        ops = [o.strip() for o in rest.split(',')] if rest else []
        mods = ''
        if ops:
            sp = ops[-1].split(None, 1)
            ops[-1] = sp[0]
            mods = sp[1] if len(sp) > 1 else ''
        self.mods = mods
        self.ops = ops
        self.dpp = ('row_' in mods or 'quad_perm' in mods or '_dpp' in op)
        if op == 's_nop':
            self.kind = 'nop'; self.states = int(ops[0]) + 1
        elif op.startswith('v_mfma') or op.startswith('v_smfmac'):
            self.kind = 'mfma'
            self.w = _regs(ops[0])
            self.rab = _regs(ops[1]) | _regs(ops[2])
            if op.startswith('v_smfmac'):
                self.rab |= _regs(ops[3]); self.rc = set(self.w)
            else:
                self.rc = _regs(ops[3])
            self.r = self.rab | self.rc
            self.passes = 8 if '32x32' in op else 4
        elif op.startswith('v_'):
            self.kind = 'valu'
            if op.startswith('v_cmp'):
                self.w = _regs(ops[0]); srcs = ops[1:]
                if op.startswith('v_cmpx'): self.w |= {'exec'}
            elif op.startswith('v_permlane') and 'swap' in op:
                self.w = _regs(ops[0]) | _regs(ops[1]); srcs = ops
            elif op in ('v_add_co_u32', 'v_sub_co_u32', 'v_addc_co_u32'):
                self.w = _regs(ops[0]) | _regs(ops[1]); srcs = ops[2:]
            elif op.startswith('v_fmac') or op.startswith('v_pk_fmac') or op.startswith('v_writelane'):
                self.w = _regs(ops[0]); srcs = ops
            else:
                self.w = _regs(ops[0]); srcs = ops[1:]
                if self.dpp: srcs = ops
            for s in srcs: self.r |= _regs(s)
        elif op.startswith('ds_'):
            self.kind = 'ds'
            if 'read' in op or 'bpermute' in op or 'swizzle' in op or 'rtn' in op:
                self.w = _regs(ops[0])
                for s in ops[1:]: self.r |= _regs(s)
            else:
                for s in ops: self.r |= _regs(s)
        elif op.startswith('buffer_') or op.startswith('global_'):
            self.kind = 'vmem'
            self.lds = bool(re.search(r'\blds\b', mods)) or '_lds_' in op
            if op.startswith('buffer_wbl2') or op.startswith('buffer_inv'):
                pass
            elif 'load' in op and not self.lds:
                self.w = _regs(ops[0])
                for s in ops[1:]: self.r |= _regs(s)
            elif 'atomic' in op and op.startswith('buffer_'):
                for s in ops: self.r |= _regs(s)
                if 'sc0' in mods: self.w = _regs(ops[0])
            else:
                for s in ops: self.r |= _regs(s)
            if self.lds: self.r |= {'m0'}
            self.wide = ('store' in op and ('x3' in op or 'x4' in op))
            if self.wide:
                self.data = _regs(ops[0]) if op.startswith('buffer_') else _regs(ops[1])
        elif op.startswith('s_'):
            self.kind = 'salu'
            if op.startswith('s_cbranch') or op == 's_branch':
                self.kind = 'branch'; self.target = ops[0]
            elif op.startswith('s_cmp') or op.startswith('s_bitcmp') or op in ('s_waitcnt', 's_barrier', 's_endpgm', 's_sleep', 's_setprio'):
                for s in ops: self.r |= _regs(s)
            else:
                if ops: self.w = _regs(ops[0])
                for s in ops[1:]: self.r |= _regs(s)
                if 'saveexec' in op: self.w |= {'exec'}
        else:
            raise ValueError('unknown instruction: ' + text)

def need(p, c):
    n = 0
    vw = {x for x in p.w if x[0] in 'va' and x != 'vcc'}
    if p.kind == 'valu':
        sw = {x for x in p.w if x[0] == 's' or x == 'vcc'}
        if c.kind == 'mfma' and vw & c.r: n = max(n, 2)
        if c.kind == 'valu':
            if c.dpp and vw & c.r: n = max(n, 2)
            if c.op.startswith('v_permlane') and vw & c.r: n = max(n, 2)
            if (c.op.startswith('v_readlane') or c.op.startswith('v_readfirstlane')) and vw & c.r: n = max(n, 1)
            if p.op.startswith(TRANS) and not c.op.startswith(TRANS) and vw & c.r: n = max(n, 1)
            if sw & c.r: n = max(n, 4 if 'lane' in c.op and not c.op.startswith('v_perm') else 2)
            if c.op.startswith('v_cndmask') and len(c.ops) == 3 and 'vcc' in sw: n = max(n, 2)
            if 'exec' in p.w: n = max(n, 5)
        if c.kind == 'mfma' and 'exec' in p.w: n = max(n, 4)
        if c.kind == 'vmem' and sw & c.r: n = max(n, 5)
    if p.kind == 'mfma':
        big = 12 if p.passes == 8 else 8
        if c.kind == 'mfma':
            if vw & c.rab: n = max(n, big)
            if vw & c.rc:
                if not (c.rc == p.w and c.passes == p.passes): n = max(n, big - 2)
            elif vw & c.w:
                n = max(n, big - 2)
        elif c.kind in ('valu', 'ds', 'vmem'):
            if vw & (c.r | c.w): n = max(n, big)
        if c.kind == 'valu' and p.rc & c.w: n = max(n, 7 if p.passes == 8 else 3)
    if p.kind == 'salu' and 'm0' in p.w and c.kind == 'vmem' and getattr(c, 'lds', False): n = max(n, 1)
    if p.kind == 'vmem' and getattr(p, 'wide', False) and p.data & c.w:
        n = max(n, 2)
    return n

WINDOW = 14

def fix_hazards(lines):
    ins = [Ins(l) for l in lines]
    out = []
    for c in ins:
        if c.states and c.kind != 'nop':
            dist = 0; req = 0
            for p in reversed(out):
                if p.states == 0: continue
                if p.kind == 'branch' and p.op == 's_branch': break
                if p.op == 's_endpgm': break
                if dist >= WINDOW: break
                if p.kind != 'nop':
                    req = max(req, need(p, c) - dist)
                dist += p.states
            if req > 0:
                out.append(Ins(f's_nop {req-1}'))
        out.append(c)
    pos = {}
    for i, c in enumerate(out):
        if c.label: pos[c.text.split(';')[0].strip()[:-1]] = i
    for i, b in enumerate(out):
        if b.kind == 'branch':
            t = pos[b.target]
            before = []
            d = 0
            for p in reversed(out[:i+1]):
                if p.states == 0: continue
                if p is not b and (p.op in ('s_branch', 's_endpgm')): break
                before.append(p); d += p.states
                if d > WINDOW: break
            d2 = 0
            for c in out[t:]:
                if c.states == 0: continue
                dist = d2
                for p in before:
                    if p.kind != 'nop' and c.kind != 'nop' and need(p, c) > dist:
                        raise RuntimeError(f'hazard across branch {b.text}: {p.text} -> {c.text}')
                    dist += p.states
                d2 += c.states
                if d2 > WINDOW or c.op in ('s_branch', 's_endpgm'): break
    return [c.text for c in out]

class Asm:
    def __init__(self):
        self.lines = []
        self.uid = 0
    def __call__(self, text):
        for l in text.split('\n'):
            l = l.strip()
            if l: self.lines.append(l)
    def label(self, name): self.lines.append(name + ':')
    def new(self, stem):
        self.uid += 1
        return f'{stem}_{self.uid}'

def v(a, n=1): return f'v{a}' if n == 1 else f'v[{a}:{a+n-1}]'
def acc(a, n=1): return f'a{a}' if n == 1 else f'a[{a}:{a+n-1}]'
def s(a, n=1): return f's{a}' if n == 1 else f's[{a}:{a+n-1}]'
```

```python
MATB = 401408
TILEB = 14336
SEGB = 28672
W   = 0
XN  = W + 40*MATB
XD  = XN + 64*SEGB
V   = XD + 64*SEGB
H   = V + 64*16*SEGB
F   = H + 64*4*SEGB
G   = F + 64*SEGB
GSEG = 28*4096
MM  = G + 64*GSEG
MMS = 14336
PM  = MM + 64*MMS
PMS = 10240
PT  = PM + 64*PMS
PTS = 40960
PAD = PT + 64*PTS
FL  = PAD + 16384
VFLAG = FL
HFLAG = FL + 4096
FFLAG = FL + 5120
GFLAG = FL + 8192
CNT   = FL + 24576
DBG = FL + 32768
WS_BYTES = 268435456
assert MM % 256 == 0 and FL % 256 == 0 and PAD - MM == 4194304
```

```python
from asmlib import *
from layout import *
from prep import srd
import workers, team

MAIN_LDS = 118784
HEADER = []
SRD = 's[4:7]'

def gen_main(a, name, opts):
    a(f'.globl {name}\n.p2align 8\n.type {name},@function')
    a.label(name)
    a('s_cmp_ge_u32 s2, 256\ns_cbranch_scc1 main_end')
    a('s_load_dwordx2 s[20:21], s[0:1], 0\ns_load_dwordx2 s[22:23], s[0:1], 80\ns_load_dwordx2 s[24:25], s[0:1], 96')
    if opts.get('stamp'):
        a('s_memrealtime s[94:95]')
    a('v_lshrrev_b32 v1, 6, v0\nv_and_b32 v0, 63, v0')
    a('v_readfirstlane_b32 s16, v1')
    a('s_getreg_b32 s26, hwreg(HW_REG_XCC_ID)\ns_and_b32 s26, s26, 7')
    if opts.get('fakexcc'):
        a('s_mul_i32 s26, s2, 9363\ns_lshr_b32 s26, s26, 16\ns_mul_i32 s26, s26, 7\ns_sub_u32 s26, s2, s26\ns_add_u32 s26, s26, 1')
        a('s_cmp_lt_u32 s2, 10\ns_cselect_b32 s26, 0, s26')
    a(f's_mov_b32 s18, {1 << 21}')
    a('s_waitcnt lgkmcnt(0)')
    srd(a, 4, 24, WS_BYTES)
    srd(a, 8, 20, 1835008)
    srd(a, 12, 22, 1835008)
    a('s_cmp_eq_u32 s16, 0\ns_cbranch_scc0 role_wait')
    a(f'v_mov_b32 v2, 1\nv_mov_b32 v3, 0\ns_lshl_b32 s27, s26, 8\ns_add_u32 s27, s27, {CNT}')
    a('s_mov_b64 exec, 1')
    a(f'buffer_atomic_add v2, v3, {SRD}, s27 offen sc0 sc1')
    a('s_waitcnt vmcnt(0)\nv_readfirstlane_b32 s28, v2\ns_mov_b64 exec, -1')
    a('s_lshl_b32 s17, s26, 5\ns_add_u32 s17, s17, s28')
    a('s_cmp_lt_u32 s28, 32\ns_cbranch_scc1 role_have')
    a(f'v_mov_b32 v2, 1\ns_mov_b32 s27, {CNT + 8*256}\ns_mov_b64 exec, 1')
    a(f'buffer_atomic_add v2, v3, {SRD}, s27 offen sc0 sc1')
    a('s_waitcnt vmcnt(0)\nv_readfirstlane_b32 s28, v2\ns_mov_b64 exec, -1')
    a.label('role_ovf')
    read_counters(a)
    a('s_cmp_ge_u32 s38, 256\ns_cbranch_scc1 role_pick')
    a('s_sub_u32 s18, s18, 1\ns_cbranch_scc1 main_end\ns_sleep 4\ns_branch role_ovf')
    a.label('role_pick')
    for x in range(8):
        a(f's_min_u32 s29, s{30+x}, 32\ns_add_u32 s17, s29, {32*x}\ns_add_u32 s17, s17, s28\ns_sub_u32 s29, 32, s29')
        a('s_cmp_lt_u32 s28, s29\ns_cbranch_scc1 role_have\ns_sub_u32 s28, s28, s29')
    a.label('role_have')
    a('v_mov_b32 v2, s17\nv_mov_b32 v3, 0\nds_write_b32 v3, v2\ns_waitcnt lgkmcnt(0)')
    a.label('role_wait')
    a('s_barrier\nv_mov_b32 v3, 0\nds_read_b32 v2, v3\ns_waitcnt lgkmcnt(0)\nv_readfirstlane_b32 s17, v2\ns_barrier')
    a('s_lshr_b32 s26, s17, 5\ns_and_b32 s27, s17, 31')
    a('s_cmp_lt_u32 s17, 16\ns_cbranch_scc1 role_A')
    a('s_cmp_lt_u32 s17, 30\ns_cbranch_scc1 role_B')
    a('s_cmp_lt_u32 s17, 32\ns_cbranch_scc1 main_end')
    a('s_cmp_lt_u32 s17, 96\ns_cbranch_scc1 role_V')
    a('s_cmp_lt_u32 s17, 160\ns_cbranch_scc1 role_P')
    a('s_cmp_lt_u32 s17, 176\ns_cbranch_scc1 role_H')
    a('s_cmp_lt_u32 s17, 192\ns_cbranch_scc1 role_F')
    a('s_cmp_lt_u32 s27, 28\ns_cbranch_scc1 role_O')
    a.label('main_end')
    a('s_endpgm')
    team.role_A(a, opts)
    team.role_B(a, opts)
    a.label('main_end2')
    a('s_endpgm')
    workers.role_V(a, opts)
    workers.role_P(a, opts)
    workers.role_H(a, opts)
    workers.role_F(a, opts)
    workers.role_O(a, opts)

def read_counters(a, d=2, t=3):
    a(f'v_and_b32 v{t}, 7, v0\nv_lshlrev_b32 v{t}, 8, v{t}\ns_mov_b32 s39, {CNT}')
    a(f'buffer_load_dword v{d}, v{t}, {SRD}, s39 offen sc1\ns_waitcnt vmcnt(0)')
    for x in range(8):
        a(f'v_readlane_b32 s{30+x}, v{d}, {x}')
    a('s_add_u32 s38, s30, s31')
    for x in range(2, 8):
        a(f's_add_u32 s38, s38, s{30+x}')
```

```python
from asmlib import *
from layout import *

def srd(a, d, ptr, nbytes):
    a(f's_mov_b32 s{d}, s{ptr}\ns_and_b32 s{d+1}, s{ptr+1}, 0xffff\ns_mov_b32 s{d+2}, {nbytes}\ns_mov_b32 s{d+3}, 0x20000')

def allreduce_hi3(a, x, t, op='v_add_f32'):
    a(f'{op}_dpp {v(x)}, {v(x)}, {v(x)} row_ror:8 row_mask:0xf bank_mask:0xf')
    a(f'v_mov_b32 {v(t)}, {v(x)}\nv_permlane16_swap_b32 {v(x)}, {v(t)}\n{op} {v(x)}, {v(x)}, {v(t)}')
    a(f'v_mov_b32 {v(t)}, {v(x)}\nv_permlane32_swap_b32 {v(x)}, {v(t)}\n{op} {v(x)}, {v(x)}, {v(t)}')

def store_units(a, q, vaddr, base_nat, base_dei, step, vodd, t):
    for i in range(7):
        d = q + 4*i
        a(f's_mov_b32 s40, {base_nat + i*step}')
        a(f'buffer_store_dwordx4 {v(d,4)}, {v(vaddr)}, s[4:7], s40 offen')
        a(f'v_cndmask_b32 {v(t+4)}, {v(d+1)}, {v(d)}, {vodd}')
        a(f'v_cndmask_b32 {v(t+5)}, {v(d+3)}, {v(d+2)}, {vodd}')
        a(f'v_mov_b32_dpp {v(t+4)}, {v(t+4)} row_ror:8 row_mask:0xf bank_mask:0xf')
        a(f'v_mov_b32_dpp {v(t+5)}, {v(t+5)} row_ror:8 row_mask:0xf bank_mask:0xf')
        a(f'v_cndmask_b32 {v(t)}, {v(d)}, {v(t+4)}, {vodd}')
        a(f'v_cndmask_b32 {v(t+1)}, {v(d+2)}, {v(t+5)}, {vodd}')
        a(f'v_cndmask_b32 {v(t+2)}, {v(t+4)}, {v(d+1)}, {vodd}')
        a(f'v_cndmask_b32 {v(t+3)}, {v(t+5)}, {v(d+3)}, {vodd}')
        a(f's_mov_b32 s41, {base_dei + i*step}')
        a(f'buffer_store_dwordx4 {v(t,4)}, {v(vaddr)}, s[4:7], s41 offen')

def rne(a, x):
    a(f'v_cvt_pk_bf16_f32 {v(x)}, {v(x)}, {v(x)}\nv_lshlrev_b32 {v(x)}, 16, {v(x)}')

PREP_LDS = 65536 + 14336

def gen_prep(a, name):
    a(f'.globl {name}\n.p2align 8\n.type {name},@function')
    a.label(name)
    a('s_cmp_ge_u32 s2, 256\ns_cbranch_scc1 prep_end')
    a('s_load_dwordx16 s[44:59], s[0:1], 0')
    a('s_load_dwordx4 s[60:63], s[0:1], 64')
    a('s_load_dwordx2 s[64:65], s[0:1], 96')
    a('v_lshrrev_b32 v1, 6, v0\nv_and_b32 v2, 63, v0')
    a('v_readfirstlane_b32 s3, v1')
    a('v_lshrrev_b32 v3, 4, v2\nv_and_b32 v4, 15, v2')
    a('s_and_b32 s24, s2, 7\ns_lshl_b32 s24, s24, 2\ns_lshr_b32 s25, s2, 3\ns_and_b32 s25, s25, 3\ns_add_u32 s24, s24, s25')
    a('s_lshr_b32 s25, s2, 5\ns_and_b32 s26, s25, 1\ns_lshr_b32 s27, s25, 1')
    a('s_and_b32 s28, s24, 15\ns_lshr_b32 s29, s24, 4')
    a('s_waitcnt lgkmcnt(0)')
    srd(a, 4, 64, WS_BYTES)
    a('s_cmp_eq_u32 s29, 0')
    a('s_cselect_b32 s30, s48, s52\ns_cselect_b32 s31, s49, s53\ns_cselect_b32 s32, s50, s54\ns_cselect_b32 s33, s51, s55')
    srd(a, 8, 30, 3670016)
    srd(a, 12, 32, 3670016)
    a('s_cmp_eq_u32 s29, 0\ns_cbranch_scc0 prep_colB')
    a('s_cmp_eq_u32 s3, 7\ns_cbranch_scc1 prep_coldone')
    a('s_mul_i32 s34, s27, 7\ns_add_u32 s34, s34, s3\ns_lshr_b32 s35, s34, 1\ns_lshl_b32 s35, s35, 5\ns_and_b32 s34, s34, 1\ns_lshl_b32 s34, s34, 2\ns_add_u32 s35, s35, s34')
    a('v_lshrrev_b32 v5, 2, v4\nv_lshlrev_b32 v5, 3, v5\nv_and_b32 v6, 3, v4\nv_add3_u32 v5, v5, v6, s35')
    a('v_lshlrev_b32 v5, 13, v5\nv_lshl_add_u32 v5, v3, 4, v5\ns_lshl_b32 s36, s28, 9\ns_lshl_b32 s37, s3, 13')
    for ks in range(8):
        a(f's_add_u32 m0, s37, {ks*1024 - ks*64}')
        a(f'buffer_load_dwordx4 v5, s[12:15], s36 offen offset:{ks*64} lds')
    a('s_branch prep_coldone')
    a.label('prep_colB')
    a('v_lshrrev_b32 v5, 1, v4\nv_xor_b32 v5, v5, v3\nv_xor_b32 v6, 4, v5')
    a('v_and_b32 v7, 1, v4\nv_lshlrev_b32 v7, 4, v7\nv_mul_u32_u24 v8, 896, v3\nv_add_u32 v7, v7, v8')
    a('v_lshl_add_u32 v5, v5, 5, v7\nv_lshl_add_u32 v6, v6, 5, v7')
    a('s_lshl_b32 s36, s28, 8\ns_lshl_b32 s37, s3, 5\ns_add_u32 s36, s36, s37\ns_mul_i32 s36, s36, 896\ns_mul_i32 s37, s27, 224\ns_add_u32 s36, s36, s37')
    a('s_lshl_b32 s37, s3, 13')
    for i in range(8):
        a(f's_add_u32 m0, s37, {i*1024}')
        a(f'buffer_load_dwordx4 {"v6" if (i>>1)&1 else "v5"}, s[12:15], s36 offen lds')
        a('s_add_u32 s36, s36, 3584')
    a.label('prep_coldone')
    a('s_cmp_eq_u32 s3, 7\ns_cbranch_scc1 prep_side')
    RF = 16
    ACC = 80
    CF = 136
    a('s_mul_i32 s34, s26, 7\ns_add_u32 s34, s34, s3')
    a('s_lshl_b32 s35, s34, 5')
    a('v_lshrrev_b32 v8, 2, v4\nv_lshlrev_b32 v8, 3, v8\nv_and_b32 v9, 3, v4\nv_add3_u32 v8, v8, v9, s35')
    a('v_lshlrev_b32 v8, 13, v8\nv_lshl_add_u32 v8, v3, 4, v8\nv_add_u32 v9, 0x8000, v8\ns_lshl_b32 s36, s28, 9')
    for ks in range(8):
        for ab in range(2):
            a(f'buffer_load_dwordx4 {v(RF+8*ks+4*ab,4)}, v{8+ab}, s[8:11], s36 offen offset:{ks*64}')
    fills(a)
    a(f's_mul_i32 s38, s24, 28\ns_mul_i32 s39, s27, 7\ns_add_u32 s38, s38, s39\ns_mul_i32 s38, s38, {TILEB}\ns_lshl_b32 s39, s34, 10\ns_add_u32 s38, s38, s39')
    a('v_lshlrev_b32 v10, 4, v2')
    a('s_cmp_eq_u32 s29, 0\ns_cbranch_scc0 prep_gemmB')
    NF = 3
    def gemm(isB):
        if isB:
            a('v_lshrrev_b32 v5, 2, v4\nv_and_b32 v6, 3, v4\nv_and_b32 v7, 1, v3\nv_lshl_add_u32 v7, v7, 2, v5')
            a('v_lshl_add_u32 v11, v3, 3, v5\nv_lshlrev_b32 v11, 8, v11\nv_lshl_add_u32 v11, v6, 3, v11')
            for t in range(7):
                a(f'v_xor_b32 v12, {t}, v7\nv_lshl_add_u32 v{152+t}, v12, 5, v11')
        a(f's_waitcnt vmcnt({16+NF})\ns_barrier')
        items = [(ks, t) for ks in range(8) for t in range(7)]
        def rd(j):
            ks, t = items[j]; q = CF + 4*(j % 4)
            if isB:
                a(f'ds_read_b64_tr_b16 {v(q,2)}, v{152+t} offset:{ks*8192}')
                a(f'ds_read_b64_tr_b16 {v(q+2,2)}, v{152+t} offset:{ks*8192+1024}')
            else:
                a(f'ds_read_b128 {v(q,4)}, v10 offset:{(t*8+ks)*1024}')
        per = 2 if isB else 1
        for j in range(3): rd(j)
        for j, (ks, t) in enumerate(items):
            if j + 3 < len(items): rd(j+3)
            left = min(3, len(items) - 1 - j)
            w = f'lgkmcnt({left*per})'
            if t == 0: w = f'vmcnt({16 - 2*(ks+1) + NF}) ' + w
            a(f's_waitcnt {w}')
            q = CF + 4*(j % 4)
            for ab in range(2):
                d = ACC + 8*t + 4*ab
                c = '0' if ks == 0 else v(d,4)
                a(f'v_mfma_f32_16x16x32_bf16 {v(d,4)}, {v(RF+8*ks+4*ab,4)}, {v(q,4)}, {c}')
    gemm(False)
    a('s_nop 7')
    for k in range(56): a(f'v_mul_f32 {v(ACC+k)}, 0x3db8aa3b, {v(ACC+k)}')
    a('s_branch prep_epi')
    a.label('prep_gemmB')
    gemm(True)
    a.label('prep_epi')
    a('s_nop 7')
    for t in range(7):
        d = ACC + 8*t
        for k in range(4):
            a(f'v_cvt_pk_bf16_f32 {v(d+k)}, {v(d+2*k)}, {v(d+2*k+1)}')
        a(f'buffer_store_dwordx4 {v(d,4)}, v10, s[4:7], s38 offen')
        a(f's_add_u32 s38, s38, {TILEB}')
    a('s_endpgm')

    a.label('prep_side')
    srd(a, 16, 44, 1835008)
    a('v_and_b32 v5, 7, v2\nv_lshrrev_b32 v6, 3, v2')
    a('s_lshl_b32 s34, s2, 3\nv_add_u32 v7, s34, v5\nv_mul_u32_u24 v7, 896, v7\nv_lshl_add_u32 v7, v6, 4, v7')
    XQ = 16
    for i in range(7):
        a(f'buffer_load_dwordx4 {v(XQ+4*i,4)}, v7, s[16:19], 0 offen offset:{i*128}')
    a('s_cmp_lt_u32 s2, 224\ns_cbranch_scc0 prep_notr')
    a('s_mul_i32 s34, s2, 2341\ns_lshr_b32 s34, s34, 16\ns_mul_i32 s35, s34, 28\ns_sub_u32 s35, s2, s35')
    a('s_lshr_b32 s36, s35, 1\ns_and_b32 s35, s35, 1')
    a('s_cmp_lt_u32 s34, 4')
    a('s_cselect_b32 s30, s60, s62\ns_cselect_b32 s31, s61, s63\ns_movk_i32 s37, 896\ns_cselect_b32 s37, 3584, s37')
    srd(a, 20, 30, 1605632)
    a('s_lshl_b32 s38, s36, 5\ns_mul_i32 s38, s38, s37\ns_mul_i32 s39, s35, 448\ns_add_u32 s38, s38, s39')
    a(f's_and_b32 s39, s34, 3\ns_cmp_lt_u32 s34, 4\ns_movk_i32 s42, 896\ns_cselect_b32 s42, s42, {448*896}\ns_mul_i32 s39, s39, s42\ns_add_u32 s38, s38, s39')
    for i in range(14):
        a(f'v_add_u32 v8, {64*i}, v2\nv_mul_u32_u24 v9, 2341, v8\nv_lshrrev_b32 v9, 16, v9\nv_mul_u32_u24 v10, 28, v9\nv_sub_u32 v8, v8, v10')
        a('v_mul_lo_u32 v9, v9, s37\nv_lshl_add_u32 v8, v8, 4, v9')
        a(f's_mov_b32 m0, {65536 + i*1024}')
        a('buffer_load_dwordx4 v8, s[20:23], s38 offen lds')
    a('s_waitcnt vmcnt(21)\ns_barrier\ns_waitcnt vmcnt(14)\ns_branch prep_ln')
    a.label('prep_notr')
    a('s_waitcnt vmcnt(7)\ns_barrier\ns_waitcnt vmcnt(0)')
    a.label('prep_ln')
    X = 48
    a('s_mov_b32 s42, 0xffff0000')
    for k in range(28):
        a(f'v_lshlrev_b32 {v(X+2*k)}, 16, {v(XQ+k)}\nv_and_b32 {v(X+2*k+1)}, s42, {v(XQ+k)}')
    a(f'v_add_f32 v8, {v(X)}, {v(X+1)}\nv_add_f32 v9, {v(X+2)}, {v(X+3)}')
    for k in range(2, 28):
        a(f'v_add_f32 v8, v8, {v(X+2*k)}\nv_add_f32 v9, v9, {v(X+2*k+1)}')
    a('v_add_f32 v8, v8, v9')
    allreduce_hi3(a, 8, 9)
    a('v_mul_f32 v8, 0x3b124925, v8')
    a('v_mov_b32 v10, 0\nv_mov_b32 v11, 0')
    for k in range(28):
        a(f'v_sub_f32 v12, {v(X+2*k)}, v8\nv_sub_f32 v13, {v(X+2*k+1)}, v8\nv_fmac_f32 v10, v12, v12\nv_fmac_f32 v11, v13, v13')
    a('v_add_f32 v10, v10, v11')
    allreduce_hi3(a, 10, 9)
    a('v_mul_f32 v10, 0x3b124925, v10')
    rne(a, 8); rne(a, 10)
    a('v_add_f32 v10, 0x3727c5ac, v10')
    rne(a, 10)
    a('v_sqrt_f32 v10, v10')
    rne(a, 10)
    a('v_rcp_f32 v10, v10')
    for k in range(28):
        a(f'v_sub_f32 v12, {v(X+2*k)}, v8\nv_sub_f32 v13, {v(X+2*k+1)}, v8\nv_cvt_pk_bf16_f32 v12, v12, v13')
        a(f'v_and_b32 v13, s42, v12\nv_lshlrev_b32 v12, 16, v12\nv_mul_f32 v12, v12, v10\nv_mul_f32 v13, v13, v10\nv_cvt_pk_bf16_f32 {v(XQ+k)}, v12, v13')
    a('v_and_b32 v8, 1, v6\nv_cmp_eq_u32 s[66:67], 1, v8')
    a(f's_lshr_b32 s43, s2, 2\ns_mul_i32 s43, s43, {SEGB}\ns_and_b32 s42, s2, 3\ns_lshl_b32 s42, s42, 7\ns_add_u32 s43, s43, s42')
    a('v_lshlrev_b32 v8, 9, v6\nv_lshl_add_u32 v8, v5, 4, v8\nv_add_u32 v8, s43, v8')
    store_units(a, XQ, 8, XN, XD, 4096, 's[66:67]', 10)
    fills(a)
    a('s_cmp_lt_u32 s2, 224\ns_cbranch_scc0 prep_mem0')
    a('s_waitcnt vmcnt(17)')
    a('v_lshrrev_b32 v5, 2, v4\nv_and_b32 v6, 3, v4')
    a('s_cmp_lt_u32 s34, 4\ns_cselect_b32 s42, 8, 4\ns_cselect_b32 s43, 4, 16\ns_mul_i32 s43, s43, 448')
    a('v_mul_lo_u32 v7, v3, s42\nv_add_u32 v7, v7, v5\nv_mul_u32_u24 v7, 448, v7\nv_lshl_add_u32 v7, v6, 3, v7\nv_add_u32 v7, 0x10000, v7\nv_add_u32 v8, s43, v7')
    for t in range(14):
        a(f'ds_read_b64_tr_b16 {v(48+4*t,2)}, v7 offset:{t*32}\nds_read_b64_tr_b16 {v(50+4*t,2)}, v8 offset:{t*32}')
    a(f's_add_u32 s38, s34, 32\ns_mul_i32 s38, s38, 28\ns_mul_i32 s39, s35, 14\ns_add_u32 s38, s38, s39\ns_mul_i32 s38, s38, {TILEB}\ns_lshl_b32 s39, s36, 10\ns_add_u32 s38, s38, s39')
    a('v_lshlrev_b32 v10, 4, v2\ns_waitcnt lgkmcnt(0)')
    for t in range(14):
        a(f'buffer_store_dwordx4 {v(48+4*t,4)}, v10, s[4:7], s38 offen\ns_add_u32 s38, s38, {TILEB}')
    a('s_endpgm')
    a.label('prep_mem0')
    a('s_cmp_eq_u32 s2, 255\ns_cbranch_scc0 prep_end')
    srd(a, 16, 46, 7168)
    a('v_mul_u32_u24 v7, 896, v5\nv_lshl_add_u32 v7, v6, 4, v7')
    for i in range(7):
        a(f'buffer_load_dwordx4 {v(48+4*i,4)}, v7, s[16:19], 0 offen offset:{i*128}')
    a('v_lshlrev_b32 v8, 7, v6\nv_lshl_add_u32 v8, v5, 4, v8\ns_waitcnt vmcnt(0)')
    for k in range(28):
        a(f'v_min_u32 {v(48+k)}, -2, {v(48+k)}')
    store_units(a, 48, 8, MM + 7168, MM, 1024, 's[66:67]', 10)
    a.label('prep_end')
    a('s_endpgm')

def fills(a):
    a('v_mov_b32 v160, -1\nv_mov_b32 v161, -1\nv_mov_b32 v162, -1\nv_mov_b32 v163, -1')
    a('v_mov_b32 v164, 0\nv_mov_b32 v165, 0\nv_mov_b32 v166, 0\nv_mov_b32 v167, 0')
    a(f'v_lshlrev_b32 v168, 4, v0\ns_lshl_b32 s40, s2, 14\ns_add_u32 s40, s40, {MM + MMS}')
    a('buffer_store_dwordx4 v[160:163], v168, s[4:7], s40 offen\ns_add_u32 s40, s40, 8192')
    a('buffer_store_dwordx4 v[160:163], v168, s[4:7], s40 offen')
    a(f's_lshl_b32 s41, s2, 13\ns_add_u32 s41, s41, {FL}\ns_cmp_lt_u32 s2, 4\ns_cselect_b32 s41, s41, 0x7ff00000')
    a('buffer_store_dwordx4 v[164:167], v168, s[4:7], s41 offen')
```

```python
from asmlib import *
from layout import *
from workers import allmax_chain, CEXP
SRD = 's[4:7]'
END = 'main_end2'
SMF = 'v_smfmac_f32_16x16x64_bf16'
DPPM = 'row_mask:0xf bank_mask:0xf'

def timeout(a, lab):
    a(f's_sub_u32 s18, s18, 1\ns_cbranch_scc0 {lab}\ns_branch {END}')

def find_same(a, tag):
    import mainrole
    a.label(f'{tag}_same')
    mainrole.read_counters(a, 116, 117)
    a(f's_mov_b32 s19, 1\ns_cmp_ge_u32 s30, 30\ns_cbranch_scc1 {tag}_samed')
    a(f's_mov_b32 s19, 0\ns_cmp_ge_u32 s38, 256\ns_cbranch_scc1 {tag}_samed')
    timeout(a, f'{tag}_same')
    a.label(f'{tag}_samed')

class Stamps:
    def __init__(self, a, opts): self.a = a; self.on = opts.get('stamp'); self.n = 0
    def __call__(self):
        if self.on:
            self.a(f's_waitcnt lgkmcnt(0)\ns_memtime s[92:93]\ns_waitcnt lgkmcnt(0)\ns_mov_b32 s{80+self.n}, s92'); self.n += 1
    def flush(self, t):
        if self.on:
            a = self.a
            for k in range(8): a(f'v_writelane_b32 {v(t)}, s{80+k}, {k}')
            a(f's_lshl_b32 s92, s17, 2\ns_add_u32 s92, s92, s16\ns_lshl_b32 s92, s92, 6\ns_add_u32 s92, s92, s21\ns_lshl_b32 s92, s92, 5\ns_add_u32 s92, s92, {DBG}')
            a(f'v_lshlrev_b32 {v(t+1)}, 2, v0\ns_mov_b64 exec, 0xff\nbuffer_store_dword {v(t)}, {v(t+1)}, {SRD}, s92 offen\ns_mov_b64 exec, -1')

def lane_parts(a, g, n):
    a(f'v_lshrrev_b32 {v(g)}, 4, v0\nv_and_b32 {v(n)}, 15, v0')

def idx_reg(a, d, n):
    a(f'v_mov_b32 {v(d)}, 0x4444\nv_mov_b32 v118, 0xeeee\nv_cmp_gt_u32 vcc, 8, {v(n)}\nv_cndmask_b32 {v(d)}, v118, {v(d)}, vcc')

def poll(a, lab, quads, addrs, t):
    a.label(lab)
    for q, (va, so, off) in zip(quads, addrs):
        a(f'buffer_load_dwordx4 {v(q,4)}, {v(va)}, {SRD}, {so} offen offset:{off} sc1')
    regs = [q + r for q in quads for r in range(4)]
    first = True
    k = 0
    for i, q in enumerate(quads):
        a(f's_waitcnt vmcnt({len(quads) - 1 - i})')
        if i == 0:
            a(f'v_max3_u32 {v(t)}, {v(q)}, {v(q+1)}, {v(q+2)}')
            pend = q + 3
        else:
            a(f'v_max3_u32 {v(t)}, {v(t)}, {v(pend)}, {v(q)}\nv_max3_u32 {v(t)}, {v(t)}, {v(q+1)}, {v(q+2)}')
            pend = q + 3
    a(f'v_max_u32 {v(t)}, {v(t)}, {v(pend)}')
    a(f'v_cmp_eq_u32 vcc, -1, {v(t)}\ns_cbranch_vccnz {lab}_again')

def poll_tail(a, lab):
    a.label(f'{lab}_again')
    timeout(a, lab)

A_STAGE = 32768
A_PART = 40960
MQ = [8, 16, 24, 28, 32, 36, 40]
TA, SA, SACC, SEL, SEL2, IDX, SB = 44, 88, 96, 108, 112, 114, 120
VX0, VX1, VSW, VSR, VSR2, VPM, VSB, VPF, VPS = 72, 73, 74, 75, 76, 77, 78, 79, 80
SBLK = 40

def a_op(k, t):
    if k == 0 and t < 4: return v(SB + 8*t, 8)
    q = 7*k + t - 4
    return acc(8*q, 8) if q < 32 else v(152 + 8*(q - 32), 8)
def a_quad(k, t, Q):
    q = 7*k + t - 4
    return acc(8*q + 4*Q, 4) if q < 32 else v(152 + 8*(q - 32) + 4*Q, 4)

def role_A(a, opts):
    st = Stamps(a, opts)
    a.label('role_A')
    a('s_lshr_b32 s28, s16, 1\ns_mul_i32 s28, s28, 7\ns_and_b32 s29, s16, 1')
    ev = [0, 1, 2, 3] + list(range(4, 14))
    od = [5, 6, 4, 3] + list(range(7, 17))
    for i in range(14):
        a(f's_cmp_eq_u32 s29, 0\ns_cselect_b32 s30, {ev[i]}, {od[i]}\ns_add_u32 s30, s30, s28')
        a(f's_sub_u32 s31, s30, 14\ns_cselect_b32 s{SBLK+i}, s30, s31')
    G, N, T = 81, 82, 83
    lane_parts(a, G, N)
    a(f'v_and_b32 {v(T)}, 4, {v(N)}\nv_lshlrev_b32 {v(T)}, 1, {v(T)}\nv_and_b32 {v(T+1)}, 2, {v(N)}\nv_lshl_add_u32 {v(T)}, {v(T+1)}, 1, {v(T)}')
    a(f'v_lshrrev_b32 {v(T+1)}, 3, {v(N)}\nv_lshl_add_u32 {v(T)}, {v(T+1)}, 1, {v(T)}\nv_and_b32 {v(T+1)}, 1, {v(N)}\nv_add_u32 {v(T)}, {v(T)}, {v(T+1)}')
    a(f'v_and_b32 {v(T+1)}, 1, {v(G)}\nv_lshlrev_b32 {v(T+2)}, 8, {v(T+1)}\nv_lshl_add_u32 {v(T)}, {v(T)}, 4, {v(T+2)}')
    a(f'v_cmp_eq_u32 s[56:57], 1, {v(T+1)}\nv_cmp_lt_u32 s[58:59], 31, v0')
    a(f's_mul_i32 s20, s17, {MATB}')
    for t in range(6):
        a(f's_lshl_b32 s30, s{SBLK + t//2}, 1\ns_add_u32 s30, s30, {t % 2}\ns_mul_i32 s30, s30, {TILEB}\ns_add_u32 s{64+t}, s30, s20')
    a(f's_lshl_b32 s30, s{SBLK+3}, 1\ns_add_u32 s30, s30, s29\ns_mul_i32 s30, s30, {TILEB}\ns_add_u32 s70, s30, s20')
    a('s_lshl_b32 s35, s16, 13')
    for k in range(7):
        w = 8 + k
        a(f'v_mov_b32 {v(w)}, s{SBLK+2*k}\nv_mov_b32 {v(T+3)}, s{SBLK+2*k+1}\nv_cndmask_b32 {v(w)}, {v(w)}, {v(T+3)}, s[58:59]\nv_lshl_add_u32 {v(w)}, {v(w)}, 10, {v(T)}')
        for t in range(7):
            for Q in range(2):
                if k == 0 and t < 4:
                    a(f's_add_u32 m0, s35, {2048*t + 1024*Q - 512*Q}')
                    a(f'buffer_load_dwordx4 {v(w)}, {SRD}, s{64+t} offen offset:{512*Q} lds')
                else:
                    a(f'buffer_load_dwordx4 {a_quad(k,t,Q)}, {v(w)}, {SRD}, s{64+t} offen offset:{512*Q}')
    a(f'v_lshrrev_b32 {v(T+1)}, 1, {v(G)}\nv_lshlrev_b32 {v(T+2)}, 4, {v(N)}\nv_lshl_add_u32 {v(T)}, {v(T+1)}, 8, {v(T+2)}')
    a(f'v_lshl_add_u32 {v(T+2)}, {v(T+1)}, 10, {v(T+2)}')
    for k in range(7):
        a(f'v_mov_b32 {v(1+k)}, s{SBLK+2*k}\nv_mov_b32 {v(T+3)}, s{SBLK+2*k+1}\nv_cndmask_b32 {v(T+3)}, {v(1+k)}, {v(T+3)}, s[56:57]')
        a(f'v_lshl_add_u32 {v(1+k)}, {v(T+3)}, 9, {v(T)}')
        if k < 2: a(f'v_lshl_add_u32 {v(VX0+k)}, {v(T+3)}, 11, {v(T+2)}')
    idx_reg(a, IDX, N)
    a(f'v_lshrrev_b32 {v(T)}, 2, {v(N)}\nv_xor_b32 {v(T)}, {v(T)}, {v(G)}\nv_and_b32 {v(T)}, 1, {v(T)}')
    a(f'v_and_b32 {v(T+1)}, 1, {v(N)}\nv_lshlrev_b32 {v(T+1)}, 4, {v(T+1)}\nv_mov_b32 {v(T+2)}, 0x3f80\nv_lshlrev_b32 {v(T+1)}, {v(T+1)}, {v(T+2)}')
    a(f'v_cmp_eq_u32 vcc, 0, {v(T)}\nv_cndmask_b32 {v(T+1)}, 0, {v(T+1)}, vcc')
    a(f'v_lshrrev_b32 {v(T)}, 3, {v(N)}\nv_bfe_u32 {v(T+2)}, {v(N)}, 1, 1\nv_lshl_add_u32 {v(T)}, {v(T)}, 1, {v(T+2)}')
    for d in range(4):
        a(f'v_cmp_eq_u32 vcc, {d}, {v(T)}\nv_cndmask_b32 {v(SEL+d)}, 0, {v(T+1)}, vcc')
    a('s_cmp_eq_u32 s29, 0\ns_cselect_b64 vcc, -1, 0')
    a(f'v_cndmask_b32 {v(SEL2)}, {v(SEL+2)}, {v(SEL)}, vcc\nv_cndmask_b32 {v(SEL2+1)}, {v(SEL+3)}, {v(SEL+1)}, vcc')
    a(f'v_and_b32 {v(T)}, 1, {v(G)}\nv_lshrrev_b32 {v(T+1)}, 1, {v(G)}\nv_lshl_add_u32 {v(T)}, {v(T)}, 2, {v(T+1)}\nv_mul_u32_u24 {v(T)}, 208, {v(T)}')
    a(f's_mul_i32 s30, s16, 1664\ns_add_u32 s30, s30, {A_PART}\nv_lshl_add_u32 {v(T)}, {v(N)}, 2, {v(T)}\nv_add_u32 {v(VSW)}, s30, {v(T)}')
    a(f'v_and_b32 {v(T)}, 7, v0\nv_mul_u32_u24 {v(T)}, 208, {v(T)}\nv_add_u32 {v(T)}, s30, {v(T)}\nv_mov_b32 v24, 0xf149f2ca\nv_mov_b32 v25, v24')
    a(f'ds_write_b64 {v(T)}, v[24:25] offset:192')
    a(f'v_and_b32 {v(T)}, 31, v0\nv_lshrrev_b32 {v(T+1)}, 5, v0\ns_lshl_b32 s30, s16, 1\nv_add_u32 {v(T+1)}, s30, {v(T+1)}')
    a(f'v_and_b32 {v(T+2)}, 1, {v(T)}\nv_lshlrev_b32 {v(T+2)}, 4, {v(T+2)}\nv_and_b32 {v(T+3)}, 8, {v(T)}\nv_add_u32 {v(T+2)}, {v(T+2)}, {v(T+3)}')
    a(f'v_and_b32 {v(T+3)}, 2, {v(T)}\nv_lshl_add_u32 {v(T+2)}, {v(T+3)}, 1, {v(T+2)}\nv_bfe_u32 {v(T+3)}, {v(T)}, 2, 1\nv_lshl_add_u32 {v(T+2)}, {v(T+3)}, 1, {v(T+2)}')
    a(f'v_lshlrev_b32 {v(T+3)}, 1, {v(T)}\nv_cmp_gt_u32 vcc, 16, {v(T)}\nv_cndmask_b32 {v(T+2)}, {v(T+3)}, {v(T+2)}, vcc')
    a(f'v_cmp_gt_u32 s[60:61], 20, {v(T)}\nv_cndmask_b32 {v(T+2)}, 48, {v(T+2)}, s[60:61]')
    a(f'v_mul_u32_u24 {v(T+3)}, 208, {v(T+1)}\nv_lshl_add_u32 {v(T+2)}, {v(T+2)}, 2, {v(T+3)}\nv_add_u32 {v(VSR)}, {A_PART}, {v(T+2)}\nv_add_u32 {v(VSR2)}, 3328, {v(VSR)}')
    a(f'v_lshlrev_b32 {v(T+2)}, 6, {v(T+1)}\nv_lshlrev_b32 {v(T+3)}, 4, {v(T+1)}\nv_add_u32 {v(T+3)}, 448, {v(T+3)}\nv_cndmask_b32 {v(T+2)}, {v(T+3)}, {v(T+2)}, vcc')
    a(f'v_lshl_add_u32 {v(T+2)}, {v(T)}, 2, {v(T+2)}\nv_bfrev_b32 {v(T+3)}, 1\nv_cndmask_b32 {v(VPM)}, {v(T+3)}, {v(T+2)}, s[60:61]')
    a(f'v_lshlrev_b32 {v(VSB)}, 4, v0\nv_add_u32 {v(VSB)}, s35, {v(VSB)}')
    a('s_lshl_b32 s30, s17, 2\ns_add_u32 s30, s30, s16')
    a(f's_mul_i32 s31, s30, 56\nv_add_u32 {v(VPF)}, s31, v0\nv_lshlrev_b32 {v(VPF)}, 7, {v(VPF)}\nv_add_u32 {v(VPF)}, {V + 16*SEGB}, {v(VPF)}\nv_mov_b32 {v(VPS)}, {16*SEGB}')
    def region(lo, per, lim, base, stride):
        a(f's_mul_i32 s31, s30, {per}\ns_sub_u32 s31, s31, {lo}\nv_add_u32 {v(T)}, s31, v0\nv_min_u32 {v(T)}, {lim - 1}, {v(T)}\nv_lshlrev_b32 {v(T)}, 7, {v(T)}\nv_add_u32 {v(T)}, {base}, {v(T)}')
        a(f'v_mov_b32 {v(T+1)}, {stride}\nv_cmp_le_u32 vcc, {lo}, v0\nv_cndmask_b32 {v(VPF)}, {v(VPF)}, {v(T)}, vcc\nv_cndmask_b32 {v(VPS)}, {v(VPS)}, {v(T+1)}, vcc')
    region(56, 4, 224, XD + SEGB, SEGB)
    region(60, 1, 56, MM + 2*MMS, MMS)
    region(61, 2, 80, PM + PMS, PMS)
    a(f's_mov_b32 s21, 0\ns_mov_b32 s22, {MM}\ns_mov_b32 s23, {XD}\ns_mul_i32 s24, s17, 640\ns_add_u32 s24, s24, {PM}\ns_mov_b32 s25, {CEXP}')
    find_same(a, 'A')
    NP = opts.get('np', 1)
    a('.p2align 6')
    a.label('A_loop')
    for t in range(4):
        for Q in range(2):
            a(f'ds_read_b128 {v(SB + 8*t + 4*Q, 4)}, {v(VSB)} offset:{2048*t + 1024*Q}')
    for r in range(28): a(f'v_mov_b32 {v(TA+r)}, 0')
    for r in range(12): a(f'v_mov_b32 {v(SACC+r)}, 0')
    a('s_waitcnt lgkmcnt(0)')
    poll(a, 'A_poll', [MQ[0], MQ[1]], [(1, 's22', 0), (2, 's22', 0)], T)
    st()
    a(f'ds_write_b128 v1, {v(MQ[0],4)} offset:{A_STAGE}\nds_write_b128 v2, {v(MQ[1],4)} offset:{A_STAGE}')
    def kstep(k):
        for t in range(7): a(f'{SMF} {v(TA+4*t,4)}, {v(MQ[k],4)}, {a_op(k,t)}, {v(IDX)}')
    kstep(0)
    a('s_waitcnt lgkmcnt(0)\ns_barrier')
    st()
    for k in range(2, 7): a(f'ds_read_b128 {v(MQ[k],4)}, {v(1+k)} offset:{A_STAGE}')
    xl = [(b, kt, Q) for b in range(2) for kt in range(2) for Q in range(2)]
    for t in range(7):
        a(f'{SMF} {v(TA+4*t,4)}, {v(MQ[1],4)}, {a_op(1,t)}, {v(IDX)}')
        for b, kt, Q in xl[t:t+1] if t < 6 else xl[6:]:
            a(f'buffer_load_dwordx4 {v(SB + 16*b + 8*kt + 4*Q, 4)}, {v(VX0+b)}, {SRD}, s23 offen offset:{512*Q + 256*kt}')
    for k in range(2, 7):
        a(f's_waitcnt lgkmcnt({6 - k})')
        for t in range(7):
            a(f'{SMF} {v(TA+4*t,4)}, {v(MQ[k],4)}, {a_op(k,t)}, {v(IDX)}')
            if k == 2 and t < NP: a(f'buffer_load_dword {v(115)}, {v(VPF)}, {SRD}, 0 offen offset:{64*t} sc1')
            if k == 2 and t == 2: a(f'v_add_u32 {v(VPF)}, {v(VPF)}, {v(VPS)}')
            if k == 3 and t < 4: a(f'v_mov_b32_dpp {v(12+t)}, {v(8+t)} row_ror:8 {DPPM}')
            if k == 4 and t < 4: a(f'v_mov_b32_dpp {v(20+t)}, {v(16+t)} row_ror:8 {DPPM}')
    st()
    def cvt(d, x): a(f'v_cvt_pk_bf16_f32 {v(d)}, {v(x)}, {v(x+1)}\nv_cvt_pk_bf16_f32 {v(d+1)}, {v(x+2)}, {v(x+3)}')
    for t in range(4): cvt(24 + 2*t, TA + 4*t)
    a(f'v_mfma_f32_16x16x32_bf16 {v(TA,4)}, v[24:27], {v(SEL,4)}, 0')
    cvt(32, TA + 16)
    a(f'v_mfma_f32_16x16x32_bf16 {v(TA+4,4)}, v[28:31], {v(SEL,4)}, 0')
    cvt(34, TA + 20); cvt(36, TA + 24)
    a(f'v_mfma_f32_16x16x32_bf16 {v(TA+8,4)}, v[32:35], {v(SEL,4)}, 0')
    a(f'v_mfma_f32_16x16x16_bf16 {v(TA+12,4)}, v[36:37], {v(SEL2,2)}, 0')
    cvt(SA, TA); cvt(SA + 2, TA + 4)
    a(f's_waitcnt vmcnt({NP})')
    for b in range(2):
        if b == 1: pass
        a(f'{SMF} {v(SACC+8,4)}, {v(SA+4*b,4)}, {v(8+8*b,8)}, {v(IDX)}')
        if b == 0: cvt(SA + 4, TA + 8)
        a(f'{SMF} {v(SACC,4)}, {v(SA+4*b,4)}, {v(SB+16*b,8)}, {v(IDX)}')
        if b == 0: cvt(SA + 6, TA + 12)
        a(f'{SMF} {v(SACC+4,4)}, {v(SA+4*b,4)}, {v(SB+16*b+8,8)}, {v(IDX)}')
    for kg in (2, 0, 1):
        q = SACC + 4*kg
        a(f'v_permlane32_swap_b32 {v(q)}, {v(q+1)}\nv_permlane32_swap_b32 {v(q+2)}, {v(q+3)}')
        a(f'v_add_f32 {v(q)}, {v(q)}, {v(q+1)}\nv_add_f32 {v(q+2)}, {v(q+2)}, {v(q+3)}')
        a(f'ds_write2_b32 {v(VSW)}, {v(q)}, {v(q+2)} offset0:{16*kg} offset1:{104 + 16*kg}')
    a('s_cmp_eq_u32 s19, 0\ns_waitcnt lgkmcnt(0)\ns_barrier')
    st()
    a(f'ds_read2_b64 v[24:27], {v(VSR)} offset1:208\nds_read2_b64 v[28:31], {v(VSR2)} offset1:208')
    a('s_waitcnt lgkmcnt(1)\nv_add_f32 v24, v24, v26\nv_add_f32 v25, v25, v27\ns_waitcnt lgkmcnt(0)')
    a('v_add_f32 v28, v28, v30\nv_add_f32 v29, v29, v31\nv_add_f32 v24, v24, v28\nv_add_f32 v25, v25, v29')
    def red(x, op):
        for r in (8, 4, 2, 1): a(f'{op}_dpp {v(x)}, {v(x)}, {v(x)} row_ror:{r} {DPPM}')
        a(f'v_mov_b32 {v(x+1)}, {v(x)}\nv_permlane16_swap_b32 {v(x)}, {v(x+1)}\n{op} {v(x)}, {v(x)}, {v(x+1)}')
    a('v_max_f32 v26, v24, v25')
    red(26, 'v_max_f32')
    a('v_mul_f32 v26, s25, v26\nv_fma_f32 v24, v24, s25, -v26\nv_fma_f32 v25, v25, s25, -v26\nv_exp_f32 v24, v24\nv_exp_f32 v25, v25')
    a('v_add_f32 v26, v24, v25')
    red(26, 'v_add_f32')
    a('v_rcp_f32 v26, v26\nv_mul_f32 v24, v24, v26\nv_mul_f32 v25, v25, v26\nv_cvt_pk_bf16_f32 v24, v24, v25\nv_min_u32 v24, -2, v24')
    if opts.get('stamp'): a('s_cmp_eq_u32 s19, 0')
    a('s_cbranch_scc1 A_far')
    a(f'buffer_store_dword v24, {v(VPM)}, {SRD}, s24 offen')
    a.label('A_back')
    st(); st.flush(116)
    a(f's_add_u32 s21, s21, 1\ns_add_u32 s22, s22, {MMS}\ns_add_u32 s23, s23, {SEGB}\ns_add_u32 s24, s24, {PMS}')
    a('s_cmp_lt_u32 s21, 63\ns_cbranch_scc1 A_loop\ns_endpgm')
    a.label('A_far')
    a(f'buffer_store_dword v24, {v(VPM)}, {SRD}, s24 offen sc1\ns_branch A_back')
    poll_tail(a, 'A_poll')

B_STAGE = 98304
B_PART = 106496
GA, VT, PQ, OA, BIDX, WB = 36, 68, 100, 112, 120, 144
VL16, VPT, VPMM, VOW, VOR, VOR2, VMI, VMX, VWL, VVF = 121, 122, 123, 124, 125, 126, 127, 128, 129, 130

def b_reg(k, hh, ct):
    if hh == 3 and k > 0: return None
    q = 2*hh + ct if k == 0 else 8 + 6*(k - 1) + 2*hh + ct
    return 256 + 8*q if q < 32 else 160 + 8*(q - 32)
def rg(r, n): return acc(r - 256, n) if r >= 256 else v(r, n)

def role_B(a, opts):
    st = Stamps(a, opts)
    a.label('role_B')
    a('s_sub_u32 s20, s17, 16')
    G, N, T = 131, 132, 133
    lane_parts(a, G, N)
    for k in range(7):
        a(f's_lshl_b32 s30, s16, 1\ns_add_u32 s30, s30, {k}\ns_sub_u32 s31, s30, 7\ns_cselect_b32 s{40+k}, s30, s31')
    a(f'v_lshrrev_b32 {v(T)}, 1, {v(G)}\nv_and_b32 {v(T+1)}, 1, {v(G)}\nv_lshlrev_b32 {v(T+2)}, 4, {v(N)}')
    a(f'v_lshl_add_u32 {v(T+3)}, {v(T)}, 10, {v(T+2)}\nv_lshl_add_u32 {v(T+3)}, {v(T+1)}, 8, {v(T+3)}')
    a(f's_lshl_b32 s30, s16, 2\ns_add_u32 s30, s30, 16\ns_mul_i32 s30, s30, {MATB}\ns_mul_i32 s31, s20, {2*TILEB}\ns_add_u32 s30, s30, s31')
    for hh in range(4):
        for ct in range(2): a(f's_add_u32 s{64 + 2*hh + ct}, s30, {hh*MATB + ct*TILEB}')
    a('s_mul_i32 s35, s16, 24576')
    for k in range(7):
        a(f's_lshl_b32 s31, s{40+k}, 11')
        for hh in range(4):
            for ct in range(2):
                a(f's_add_u32 s33, s31, s{64 + 2*hh + ct}')
                r = b_reg(k, hh, ct)
                for Q in range(2):
                    if r is None:
                        a(f's_add_u32 m0, s35, {4096*(k-1) + 2048*ct + 1024*Q - 512*Q}')
                        a(f'buffer_load_dwordx4 {v(T+3)}, {SRD}, s33 offen offset:{512*Q} lds')
                    else:
                        a(f'buffer_load_dwordx4 {rg(r + 4*Q, 4)}, {v(T+3)}, {SRD}, s33 offen offset:{512*Q}')
    a(f'v_lshl_add_u32 {v(T+2)}, {v(T)}, 8, {v(T+2)}\nv_lshl_add_u32 {v(T+2)}, {v(T+1)}, 9, {v(T+2)}')
    for k in range(7):
        a(f's_lshl_b32 s31, s{40+k}, 10')
        if k < 2: a(f'v_add_u32 {v(1+k)}, s31, {v(T+2)}\nv_add_u32 {v(138+k)}, {B_STAGE}, {v(1+k)}')
        else: a(f's_add_u32 s31, s31, {B_STAGE}\nv_add_u32 {v(1+k)}, s31, {v(T+2)}')
    a(f'v_and_b32 {v(T+2)}, 7, {v(N)}\nv_lshrrev_b32 {v(T+3)}, 3, {v(N)}')
    a('s_mul_i32 s30, s16, 2560')
    a(f'v_mul_u32_u24 {v(VPT)}, 640, {v(T)}\nv_lshl_add_u32 {v(VPT)}, {v(T+2)}, 6, {v(VPT)}\nv_lshl_add_u32 {v(VPT)}, {v(T+1)}, 5, {v(VPT)}\nv_lshl_add_u32 {v(VPT)}, {v(T+3)}, 4, {v(VPT)}\nv_add_u32 {v(VPT)}, s30, {v(VPT)}')
    a(f'v_lshl_add_u32 {v(VPMM)}, {v(T)}, 1, {v(T+3)}\nv_mul_u32_u24 {v(VPMM)}, 640, {v(VPMM)}\nv_lshl_add_u32 {v(VPMM)}, {v(T+2)}, 4, {v(VPMM)}\nv_add_u32 {v(VPMM)}, s30, {v(VPMM)}')
    a(f'v_lshlrev_b32 {v(VL16)}, 4, v0\nv_add_u32 {v(VWL)}, s35, {v(VL16)}')
    a(f's_mul_i32 s30, s16, 1280\ns_add_u32 s30, s30, {B_PART}\nv_lshl_add_u32 {v(VOW)}, {v(T)}, 4, {v(VL16)}\nv_add_u32 {v(VOW)}, s30, {v(VOW)}')
    a(f's_lshl_b32 s30, s16, 1\nv_add_u32 {v(T+1)}, s30, {v(T+1)}')
    a(f'v_mul_u32_u24 {v(VOR)}, 528, {v(T+3)}\nv_lshl_add_u32 {v(VOR)}, {v(T+2)}, 5, {v(VOR)}\nv_lshrrev_b32 {v(T)}, 2, {v(T+1)}\nv_lshl_add_u32 {v(VOR)}, {v(T)}, 8, {v(VOR)}')
    a(f'v_and_b32 {v(T)}, 3, {v(T+1)}\nv_lshl_add_u32 {v(VOR)}, {v(T)}, 2, {v(VOR)}\nv_add_u32 {v(VOR)}, {B_PART}, {v(VOR)}\nv_add_u32 {v(VOR2)}, 16, {v(VOR)}')
    a(f's_lshl_b32 s30, s20, 9\nv_lshl_add_u32 {v(T+1)}, {v(T+1)}, 4, s30')
    a(f'v_lshl_add_u32 {v(VMI)}, {v(T+3)}, 8, {v(T+1)}\nv_and_b32 {v(T)}, 1, {v(N)}\nv_lshl_add_u32 {v(VMI)}, {v(T)}, 7, {v(VMI)}\nv_lshrrev_b32 {v(T)}, 1, {v(T+2)}\nv_lshl_add_u32 {v(VMI)}, {v(T)}, 2, {v(VMI)}')
    a(f'v_lshrrev_b32 {v(T)}, 2, {v(N)}\nv_lshl_add_u32 {v(VMX)}, {v(T)}, 7, {v(T+1)}\nv_and_b32 {v(T)}, 3, {v(N)}\nv_lshl_add_u32 {v(VMX)}, {v(T)}, 2, {v(VMX)}\nv_add_u32 {v(VMX)}, 7168, {v(VMX)}')
    a(f'v_bfrev_b32 {v(T)}, 1\nv_cmp_gt_u32 vcc, 32, v0\nv_cndmask_b32 {v(VMI)}, {v(T)}, {v(VMI)}, vcc\nv_cndmask_b32 {v(VMX)}, {v(T)}, {v(VMX)}, vcc')
    a(f'v_cmp_eq_u32 vcc, 0, v0\nv_cndmask_b32 v140, {v(T)}, v0, vcc\nv_mov_b32 v141, 1')
    a(f'v_lshlrev_b32 {v(VVF)}, 6, v0')
    idx_reg(a, BIDX, N)
    a(f's_mov_b32 s21, 0\ns_mov_b32 s22, {MM}\ns_mov_b32 s24, {PM}')
    a(f's_lshl_b32 s30, s16, 2\ns_mul_i32 s30, s30, {SEGB}\ns_lshl_b32 s31, s20, 11\ns_add_u32 s30, s30, s31\ns_add_u32 s23, s30, {V}')
    a(f's_lshl_b32 s30, s20, 14\ns_lshl_b32 s31, s16, 11\ns_add_u32 s30, s30, s31\ns_add_u32 s25, s30, {G_}')
    a(f's_lshl_b32 s30, s20, 4\ns_lshl_b32 s31, s16, 2\ns_add_u32 s30, s30, s31\ns_add_u32 s26, s30, {GFLAG}')
    a(f's_lshl_b32 s30, s16, 4\ns_add_u32 s27, s30, {VFLAG}\ns_mov_b64 s[62:63], 0')
    find_same(a, 'B')
    def wl(k):
        for ct in range(2):
            for Q in range(2):
                a(f'ds_read_b128 {v(WB + 8*ct + 4*Q, 4)}, {v(VWL)} offset:{4096*(k-1) + 2048*ct + 1024*Q}')
    def smf(k, hh, ct):
        r = b_reg(k, hh, ct)
        a(f'{SMF} {v(GA + 16*ct + 4*hh, 4)}, {v(8 + 4*k, 4)}, {rg(r, 8) if r is not None else v(WB + 8*ct, 8)}, {v(BIDX)}')
    def gstore():
        a('s_add_u32 s33, s25, 8192')
        for ct in range(2):
            for pp in range(2):
                a(f'buffer_store_dwordx4 {v(GA + 16*ct + 4*pp, 4)}, {v(VL16)}, {SRD}, {"s25" if ct == 0 else "s33"} offen offset:{1024*pp} sc1')
    a('.p2align 6')
    a.label('B_loop')
    wl(1)
    for r in range(32): a(f'v_mov_b32 {v(GA+r)}, 0')
    for r in range(8): a(f'v_mov_b32 {v(OA+r)}, 0')
    poll(a, 'B_poll', [8, 12], [(1, 's22', 0), (2, 's22', 0)], T)
    st()
    a(f'ds_write_b128 v138, v[8:11]\nds_write_b128 v139, v[12:15]')
    a('s_bitcmp1_b64 s[62:63], s21\ns_cbranch_scc0 B_vwait')
    a.label('B_vok')
    k = 0
    for hh in range(4):
        for ct in range(2):
            smf(0, hh, ct)
            if hh % 2 == 0 and ct == 0: a(f's_add_u32 s33, s23, {hh*SEGB}\ns_add_u32 s34, s23, {(hh+1)*SEGB}')
            a(f'buffer_load_dwordx4 {v(VT + 16*(hh//2) + 8*ct + 4*(hh%2), 4)}, {v(VL16)}, {SRD}, {"s33" if hh % 2 == 0 else "s34"} offen offset:{1024*ct} sc1')
    a('s_cmp_eq_u32 s21, 0\ns_cselect_b32 s33, 0x7ff00000, s26\ns_sub_u32 s33, s33, 256')
    a(f'buffer_store_dword v141, v140, {SRD}, s33 offen sc1')
    a('s_waitcnt lgkmcnt(0)\ns_barrier')
    st()
    for k in range(2, 7): a(f'ds_read_b128 {v(8 + 4*k, 4)}, {v(1+k)}')
    for k in range(1, 7):
        if k > 1: a('s_waitcnt lgkmcnt(0)')
        smf(k, 3, 0); smf(k, 3, 1)
        if k < 6: wl(k + 1)
        for hh in range(3):
            for ct in range(2): smf(k, hh, ct)
    for hh in (0, 1, 2, 3):
        for ct in range(2):
            for jj in range(2):
                b = GA + 16*ct
                a(f'v_cvt_pk_bf16_f32 {v(b + 4*(hh//2) + 2*jj + hh%2)}, {v(b + 4*hh + 2*jj)}, {v(b + 4*hh + 2*jj + 1)}')
    a('s_cmp_eq_u32 s21, 63\ns_cbranch_scc1 B_last')
    st()
    poll(a, 'B_pollp', [PQ, PQ+4, PQ+8], [(VPT, 's24', 0), (VPT, 's24', 1280), (VPMM, 's24', 512)], T)
    st()
    for pp in range(3):
        for ct in range(2):
            b = v(VT + 16*pp + 8*ct, 8) if pp < 2 else v(GA + 16*ct, 8)
            a(f'{SMF} {v(OA + 4*ct, 4)}, {v(PQ + 4*pp, 4)}, {b}, {v(BIDX)}')
    a(f's_add_u32 s22, s22, {MMS}\ns_cmp_eq_u32 s19, 0')
    for r in range(4): a(f'v_permlane32_swap_b32 {v(OA+r)}, {v(OA+4+r)}')
    for r in range(4): a(f'v_add_f32 {v(OA+r)}, {v(OA+r)}, {v(OA+4+r)}')
    a(f'ds_write_b128 {v(VOW)}, {v(OA,4)}\ns_waitcnt lgkmcnt(0)\ns_barrier')
    st()
    a(f'ds_read2st64_b32 v[100:101], {v(VOR)} offset1:5\nds_read2st64_b32 v[102:103], {v(VOR2)} offset1:5')
    a(f'ds_read2st64_b32 v[104:105], {v(VOR)} offset0:10 offset1:15\nds_read2st64_b32 v[106:107], {v(VOR2)} offset0:10 offset1:15')
    a('s_waitcnt lgkmcnt(2)\nv_add_f32 v100, v100, v101\nv_add_f32 v102, v102, v103\ns_waitcnt lgkmcnt(0)')
    a('v_add_f32 v104, v104, v105\nv_add_f32 v106, v106, v107\nv_add_f32 v100, v100, v104\nv_add_f32 v102, v102, v106')
    a('v_cvt_pk_bf16_f32 v100, v100, v102\nv_min_u32 v100, -2, v100')
    if opts.get('stamp'): a('s_cmp_eq_u32 s19, 0')
    a('s_cbranch_scc1 B_far')
    a(f'buffer_store_dword v100, {v(VMI)}, {SRD}, s22 offen')
    a.label('B_back')
    a(f'buffer_store_dword v100, {v(VMX)}, {SRD}, s22 offen sc1')
    gstore()
    st(); st.flush(142)
    a(f's_add_u32 s21, s21, 1\ns_add_u32 s23, s23, {16*SEGB}\ns_add_u32 s24, s24, {PMS}\ns_add_u32 s25, s25, {GSEG}\ns_add_u32 s26, s26, 256')
    a('s_branch B_loop')
    a.label('B_far')
    a(f'buffer_store_dword v100, {v(VMI)}, {SRD}, s22 offen sc1\ns_branch B_back')
    a.label('B_last')
    gstore()
    a(f's_waitcnt vmcnt(0)\nbuffer_store_dword v141, v140, {SRD}, s26 offen sc1\ns_endpgm')
    a.label('B_vwait')
    a(f'buffer_load_dwordx4 v[100:103], {v(VVF)}, {SRD}, s27 offen sc1\ns_waitcnt vmcnt(0)')
    a('v_min3_u32 v100, v100, v101, v102\nv_min_u32 v100, v100, v103\nv_cmp_ne_u32 s[62:63], 0, v100\ns_nop 4')
    a('s_bitcmp1_b64 s[62:63], s21\ns_cbranch_scc1 B_vok')
    timeout(a, 'B_vwait')
    poll_tail(a, 'B_poll')
    poll_tail(a, 'B_pollp')

G_ = G
```

```python
from asmlib import *
from layout import *
SRD = 's[4:7]'
RING = 32
ACC = 64
SK = 40
ST = 56
END = 'main_end2'

def wreg(i, t):
    q = 7*i + t
    return acc(4*q, 4) if q < 64 else v(120 + 4*(q - 64), 4)
def A(t, qt): return ACC + 8*t + 4*qt

def timeout(a, lab, sleep=0):
    a(f's_sub_u32 s18, s18, 1\ns_cbranch_scc1 {END}')
    if sleep: a(f's_sleep {sleep}')
    a(f's_branch {lab}')

def setup(a, paired, tile0):
    a('s_lshr_b32 s28, s16, 1\ns_mul_i32 s28, s28, 7\ns_and_b32 s29, s16, 1')
    for i in range(14):
        a(f's_cmp_eq_u32 s29, 0\ns_cselect_b32 s30, {4+i}, {16-i}\ns_add_u32 s30, s30, s28')
        for _ in range(2):
            a('s_sub_u32 s31, s30, 14\ns_cselect_b32 s30, s30, s31')
        a(f's_lshl_b32 s{SK+i}, s30, 11')
    if paired:
        for p in range(3):
            a(f's_lshr_b32 s{ST+2*p}, s{SK+10+p}, 10\ns_add_u32 s{ST+2*p+1}, s{ST+2*p}, 1')
        a(f's_lshr_b32 s{ST+6}, s{SK+13}, 10\ns_add_u32 s{ST+6}, s{ST+6}, s29')
    else:
        for t in range(7):
            a(f's_mul_i32 s{ST+t}, {tile0}, 7\ns_add_u32 s{ST+t}, s{ST+t}, {t}')
    a('v_lshlrev_b32 v1, 4, v0\nv_lshrrev_b32 v3, 4, v0\nv_and_b32 v4, 15, v0\nv_lshlrev_b32 v2, 9, v3\nv_lshl_add_u32 v2, v4, 4, v2')
    a(f's_mul_i32 s30, s20, {MATB}')
    for t in range(7):
        a(f's_mul_i32 s{64+t}, s{ST+t}, {TILEB}\ns_add_u32 s{64+t}, s{64+t}, s30')
    for i in range(14):
        a(f's_lshr_b32 s31, s{SK+i}, 1')
        for t in range(7):
            a(f's_add_u32 s33, s31, s{64+t}')
            a(f'buffer_load_dwordx4 {wreg(i,t)}, v1, {SRD}, s33 offen')

def gemm(a, tokrows, sbase, flags=''):
    def ld(j):
        a(f's_add_u32 s33, {sbase}, s{SK + j//2}')
        a(f'buffer_load_dwordx4 {v(RING + 4*(j % 8), 4)}, v2, {SRD}, s33 offen offset:{256*(j % 2)} {flags}')
    for j in range(8): ld(j)
    for j in range(28):
        i, qt = divmod(j, 2)
        a(f's_waitcnt vmcnt({min(7, 27 - j)})')
        x = v(RING + 4*(j % 8), 4)
        for t in range(7):
            d = v(A(t, qt), 4)
            c = '0' if i == 0 else d
            if tokrows: a(f'v_mfma_f32_16x16x32_bf16 {d}, {x}, {wreg(i,t)}, {c}')
            else:       a(f'v_mfma_f32_16x16x32_bf16 {d}, {wreg(i,t)}, {x}, {c}')
        if j + 8 < 28: ld(j + 8)

def flag_store(a, soff):
    lab = a.new('noflag')
    a(f's_waitcnt vmcnt(0)\ns_barrier\ns_cmp_eq_u32 s16, 0\ns_cbranch_scc0 {lab}')
    a(f'v_mov_b32 v5, 1\nv_mov_b32 v6, 0\ns_mov_b64 exec, 1\nbuffer_store_dword v5, v6, {SRD}, {soff} offen sc1\ns_mov_b64 exec, -1')
    a.label(lab)

def loop_end(a, lab, step=4):
    a(f's_add_u32 s21, s21, {step}\ns_cmp_lt_u32 s21, 64\ns_cbranch_scc1 {lab}')
    a('s_endpgm')

def pack2(a, d, x, y):
    a(f'v_cvt_pk_bf16_f32 {v(d)}, {v(x)}, {v(x+1)}\nv_cvt_pk_bf16_f32 {v(d+1)}, {v(x+2)}, {v(x+3)}')
    a(f'v_cvt_pk_bf16_f32 {v(d+2)}, {v(y)}, {v(y+1)}\nv_cvt_pk_bf16_f32 {v(d+3)}, {v(y+2)}, {v(y+3)}')

def role_V(a, opts):
    a.label('role_V')
    a('s_sub_u32 s27, s17, 32\ns_lshr_b32 s22, s27, 2\ns_and_b32 s21, s27, 3\ns_add_u32 s20, s22, 16')
    setup(a, False, 's16')
    a.label('V_loop')
    a(f's_mul_i32 s23, s21, {SEGB}\ns_add_u32 s23, s23, {XN}')
    gemm(a, True, 's23')
    a(f's_lshl_b32 s24, s21, 4\ns_add_u32 s24, s24, s22\ns_lshl_b32 s25, s24, 2\ns_add_u32 s25, s25, {VFLAG}')
    a(f's_mul_i32 s24, s24, {SEGB}\ns_add_u32 s24, s24, {V}\ns_mul_i32 s33, s16, 7168\ns_add_u32 s24, s24, s33')
    for t in range(7):
        pack2(a, A(t,0), A(t,0), A(t,1))
        if t == 4: a('s_add_u32 s24, s24, 4096')
        a(f'buffer_store_dwordx4 {v(A(t,0),4)}, v1, {SRD}, s24 offen offset:{1024*(t % 4)} sc1')
    flag_store(a, 's25')
    loop_end(a, 'V_loop')

def role_H(a, opts):
    a.label('role_H')
    a('s_sub_u32 s27, s17, 160\ns_lshr_b32 s22, s27, 2\ns_and_b32 s21, s27, 3\ns_add_u32 s20, s22, 32')
    setup(a, True, None)
    a('s_lshl_b32 s34, s29, 3\nv_add_u32 v7, s34, v2')
    a.label('H_loop')
    a(f's_mul_i32 s23, s21, {SEGB}\ns_add_u32 s23, s23, {XN}')
    gemm(a, False, 's23')
    a(f's_lshl_b32 s24, s21, 2\ns_add_u32 s24, s24, s22\ns_lshl_b32 s25, s24, 2\ns_add_u32 s25, s25, {HFLAG}')
    a(f's_mul_i32 s24, s24, {SEGB}\ns_add_u32 s24, s24, {H}')
    def silu(q):
        for r in range(4): a(f'v_mul_f32 {v(8+r)}, 0xbfb8aa3b, {v(q+r)}')
        for r in range(4): a(f'v_exp_f32 {v(8+r)}, {v(8+r)}')
        for r in range(4): a(f'v_add_f32 {v(8+r)}, 1.0, {v(8+r)}')
        for r in range(4): a(f'v_rcp_f32 {v(8+r)}, {v(8+r)}')
        for r in range(4): a(f'v_mul_f32 {v(q+r)}, {v(q+r)}, {v(8+r)}')
    for p in range(3):
        a(f's_add_u32 s33, s24, s{SK+10+p}')
        for qt in range(2):
            silu(A(2*p, qt)); silu(A(2*p+1, qt))
            pack2(a, A(2*p,qt), A(2*p,qt), A(2*p+1,qt))
            a(f'buffer_store_dwordx4 {v(A(2*p,qt),4)}, v2, {SRD}, s33 offen offset:{256*qt} sc1')
    a(f's_add_u32 s33, s24, s{SK+13}')
    for qt in range(2):
        q = A(6, qt)
        silu(q)
        a(f'v_cvt_pk_bf16_f32 {v(q)}, {v(q)}, {v(q+1)}\nv_cvt_pk_bf16_f32 {v(q+1)}, {v(q+2)}, {v(q+3)}')
        a(f'buffer_store_dwordx2 {v(q,2)}, v7, {SRD}, s33 offen offset:{256*qt} sc1')
    flag_store(a, 's25')
    loop_end(a, 'H_loop')

def wait_flags(a, soff, n, sleep=2):
    lab = a.new('wf'); done = a.new('wfd')
    a('v_mov_b32 v6, 0')
    a.label(lab)
    if n == 1:
        a(f'buffer_load_dword v8, v6, {SRD}, {soff} offen sc1\ns_waitcnt vmcnt(0)')
    else:
        a(f'buffer_load_dwordx4 v[8:11], v6, {SRD}, {soff} offen sc1\ns_waitcnt vmcnt(0)')
        a('v_min3_u32 v8, v8, v9, v10\nv_min_u32 v8, v8, v11')
    a(f'v_cmp_eq_u32 vcc, 0, v8\ns_cbranch_vccz {done}')
    timeout(a, lab, sleep)
    a.label(done)

def role_F(a, opts):
    a.label('role_F')
    a('s_sub_u32 s27, s17, 176\ns_lshr_b32 s22, s27, 2\ns_and_b32 s21, s27, 3\ns_add_u32 s20, s16, 36')
    setup(a, False, 's22')
    a('s_mul_i32 s34, s16, 14336\nv_add_u32 v7, s34, v1')
    a('s_lshl_b32 s34, s16, 10\nv_add_u32 v12, s34, v1')
    a('v_lshlrev_b32 v13, 3, v0')
    a.label('F_loop')
    a(f's_lshl_b32 s24, s21, 2\ns_add_u32 s24, s24, s16\ns_lshl_b32 s25, s24, 2\ns_add_u32 s25, s25, {HFLAG}')
    a(f's_mul_i32 s23, s24, {SEGB}\ns_add_u32 s23, s23, {H}')
    wait_flags(a, 's25', 1)
    gemm(a, False, 's23', 'sc1')
    for t in range(7):
        for qt in range(2):
            a(f'ds_write_b128 v7, {v(A(t,qt),4)} offset:{1024*(2*t+qt)}')
    a(f's_lshl_b32 s25, s21, 2\ns_add_u32 s25, s25, s22\ns_lshl_b32 s25, s25, 2\ns_add_u32 s25, s25, {FFLAG}')
    a(f's_mul_i32 s24, s21, {SEGB}\ns_add_u32 s24, s24, {F}\ns_mul_i32 s33, s22, 7168\ns_add_u32 s24, s24, s33\ns_lshl_b32 s33, s16, 9\ns_add_u32 s24, s24, s33')
    a('s_waitcnt lgkmcnt(0)\ns_barrier')
    for k in range(4):
        if k == 3: a('s_cmp_lt_u32 s16, 2\ns_cbranch_scc0 F_skip')
        for p in range(4):
            a(f'ds_read_b128 {v(RING+4*p,4)}, v12 offset:{4096*k + 14336*p}')
        a('s_waitcnt lgkmcnt(0)')
        for r in range(4):
            a(f'v_add_f32 {v(RING+r)}, {v(RING+r)}, {v(RING+4+r)}\nv_add_f32 {v(RING+8+r)}, {v(RING+8+r)}, {v(RING+12+r)}\nv_add_f32 {v(RING+r)}, {v(RING+r)}, {v(RING+8+r)}')
        q = RING + 16 + 2*k
        a(f'v_cvt_pk_bf16_f32 {v(q)}, {v(RING)}, {v(RING+1)}\nv_cvt_pk_bf16_f32 {v(q+1)}, {v(RING+2)}, {v(RING+3)}')
        if k == 2: a('s_add_u32 s24, s24, 4096')
        a(f'buffer_store_dwordx2 {v(q,2)}, v13, {SRD}, s24 offen offset:{2048*(k % 2)} sc1')
    a.label('F_skip')
    flag_store(a, 's25')
    loop_end(a, 'F_loop')

def allmax_chain(a, t, regs):
    regs = list(regs)
    a(f'v_max3_u32 {v(t)}, {v(regs[0])}, {v(regs[1])}, {v(regs[2])}')
    k = 3
    while k + 1 < len(regs):
        a(f'v_max3_u32 {v(t)}, {v(t)}, {v(regs[k])}, {v(regs[k+1])}'); k += 2
    if k < len(regs): a(f'v_max_u32 {v(t)}, {v(t)}, {v(regs[k])}')

def red45(a, x, t, op):
    a(f'v_mov_b32 {v(t)}, {v(x)}\nv_permlane16_swap_b32 {v(x)}, {v(t)}\n{op} {v(x)}, {v(x)}, {v(t)}')
    a(f'v_mov_b32 {v(t)}, {v(x)}\nv_permlane32_swap_b32 {v(x)}, {v(t)}\n{op} {v(x)}, {v(x)}, {v(t)}')

CEXP = 0x3db8aa3b

def role_P(a, opts):
    a.label('role_P')
    a('s_sub_u32 s27, s17, 96\ns_lshr_b32 s22, s27, 2\ns_and_b32 s21, s27, 3\ns_mov_b32 s20, s22')
    setup(a, True, None)
    a('v_and_b32 v7, 7, v4\nv_lshlrev_b32 v7, 4, v7\nv_lshl_add_u32 v7, v3, 7, v7')
    a('s_mul_i32 s34, s16, 5120\nv_add_u32 v12, s34, v1')
    a('s_lshl_b32 s34, s16, 10\nv_add_u32 v13, s34, v1\nv_mov_b32 v14, v1')
    a('s_lshl_b32 s34, s16, 4\nv_lshlrev_b32 v15, 2, v3\nv_sub_u32 v15, v4, v15\nv_add_u32 v15, s34, v15')
    a('s_and_b32 s34, s22, 1\ns_lshl_b32 s34, s34, 2\nv_add_u32 v16, s34, v1\nv_mov_b32 v17, 0x80000000')
    a('s_mov_b32 s36, -1\ns_mov_b32 s37, 0\nv_cndmask_b32 v16, v17, v16, s[36:37]')
    a(f's_mov_b32 s38, {CEXP}\nv_mov_b32 v18, 0xd06e6b28')
    S00, S01, S11, M0, M1 = A(1,0), A(1,1), A(3,0), A(3,1), A(5,0)
    def ring(p, kt): return RING + 4*((20 + 2*p + kt) % 8)
    def TB(p, qt): return A(2*p, qt)
    a.label('P_loop')
    a(f's_mul_i32 s23, s21, {SEGB}\ns_add_u32 s23, s23, {XN}')
    gemm(a, False, 's23')
    for p in range(3):
        for qt in range(2): pack2(a, TB(p,qt), A(2*p,qt), A(2*p+1,qt))
    a('s_cmp_eq_u32 s29, 0\ns_cbranch_scc0 P_odd')
    for qt in range(2):
        q = A(6, qt)
        a(f'v_cvt_pk_bf16_f32 {v(q)}, {v(q)}, {v(q+1)}\nv_cvt_pk_bf16_f32 {v(q+1)}, {v(q+2)}, {v(q+3)}\nv_mov_b32 {v(q+2)}, 0\nv_mov_b32 {v(q+3)}, 0')
    a('s_branch P_join')
    a.label('P_odd')
    for qt in range(2):
        q = A(6, qt)
        a(f'v_cvt_pk_bf16_f32 {v(q+3)}, {v(q+2)}, {v(q+3)}\nv_cvt_pk_bf16_f32 {v(q+2)}, {v(q)}, {v(q+1)}\nv_mov_b32 {v(q)}, 0\nv_mov_b32 {v(q+1)}, 0')
    a.label('P_join')
    a('s_nop 1')
    for p in range(4):
        for d, kt, qt in ((S00,0,0), (S01,0,1), (S11,1,1)):
            c = '0' if p == 0 else v(d,4)
            a(f'v_mfma_f32_16x16x32_bf16 {v(d,4)}, {v(ring(p,kt),4)}, {v(TB(p,qt),4)}, {c}')
    a(f's_mul_i32 s24, s21, {MMS}\ns_add_u32 s24, s24, {MM + 7168}')
    for p in range(4):
        a(f's_lshr_b32 s33, s{SK+10+p}, 2\ns_add_u32 s{72+p}, s33, s24')
    a.label('P_poll')
    for p in range(4):
        a(f'buffer_load_dwordx4 {v(RING+4*p,4)}, v7, {SRD}, s{72+p} offen sc1')
    a('s_waitcnt vmcnt(0)')
    allmax_chain(a, 8, range(RING, RING+16))
    a('v_cmp_eq_u32 vcc, -1, v8\ns_cbranch_vccz P_got')
    timeout(a, 'P_poll', 1)
    a.label('P_got')
    for p in range(4):
        for d, qt in ((M0,0), (M1,1)):
            c = '0' if p == 0 else v(d,4)
            a(f'v_mfma_f32_16x16x32_bf16 {v(d,4)}, {v(RING+4*p,4)}, {v(TB(p,qt),4)}, {c}')
    for k, d in enumerate((S00, S01, S11, M0, M1)):
        a(f'ds_write_b128 v12, {v(d,4)} offset:{1024*k}')
    a('v_xor_b32 v12, 0x8000, v12')
    a('s_waitcnt lgkmcnt(0)\ns_barrier')
    a('s_cmp_lt_u32 s16, 2\ns_cbranch_scc0 P_next')
    R = RING
    for k, (ad, off) in enumerate((('v13', 0), ('v14', 2048), ('v13', 3072))):
        for p in range(4):
            a(f'ds_read_b128 {v(R + 16*k + 4*p, 4)}, {ad} offset:{off + 5120*p}')
    a(f's_mul_i32 s24, s21, {PTS}\ns_add_u32 s24, s24, {PT}\ns_lshr_b32 s25, s22, 1\ns_lshl_b32 s25, s25, 1\ns_add_u32 s25, s25, s16\ns_lshl_b32 s25, s25, 9\ns_add_u32 s25, s25, s24\ns_add_u32 s25, s25, 32768')
    a('s_lshl_b32 s33, s22, 1\ns_add_u32 s33, s33, s16\ns_lshl_b32 s33, s33, 10\ns_add_u32 s24, s24, s33')
    for k in range(3):
        a(f's_waitcnt lgkmcnt({8 - 4*k})')
        b = R + 16*k
        for r in range(4):
            a(f'v_add_f32 {v(b+r)}, {v(b+r)}, {v(b+4+r)}\nv_add_f32 {v(b+8+r)}, {v(b+8+r)}, {v(b+12+r)}\nv_add_f32 {v(b+r)}, {v(b+r)}, {v(b+8+r)}')
        if k < 2:
            for r in range(4):
                a(f'v_cmp_le_i32 vcc, {16*k + r}, v15\nv_cndmask_b32 {v(b+r)}, v18, {v(b+r)}, vcc')
    vals = [R + 16*k + r for k in range(3) for r in range(4)]
    a(f'v_max3_f32 v8, {v(vals[0])}, {v(vals[1])}, {v(vals[2])}')
    for k in range(3, 11, 2): a(f'v_max3_f32 v8, v8, {v(vals[k])}, {v(vals[k+1])}')
    a(f'v_max_f32 v8, v8, {v(vals[11])}')
    red45(a, 8, 9, 'v_max_f32')
    a('v_mul_f32 v8, s38, v8')
    for x in vals: a(f'v_fma_f32 {v(x)}, {v(x)}, s38, -v8')
    for x in vals: a(f'v_exp_f32 {v(x)}, {v(x)}')
    a(f'v_add_f32 v10, {v(vals[8])}, {v(vals[9])}\nv_add_f32 v11, {v(vals[10])}, {v(vals[11])}\nv_add_f32 v10, v10, v11\nv_cndmask_b32 v10, 0, v10, s[36:37]')
    for x in vals[:8]: a(f'v_add_f32 v10, v10, {v(x)}')
    red45(a, 10, 9, 'v_add_f32')
    a('v_rcp_f32 v10, v10')
    for x in vals: a(f'v_mul_f32 {v(x)}, {v(x)}, v10')
    pack2(a, R+4, R, R+16)
    a(f'v_cvt_pk_bf16_f32 {v(R+8)}, {v(R+32)}, {v(R+33)}\nv_cvt_pk_bf16_f32 {v(R+9)}, {v(R+34)}, {v(R+35)}')
    for k in range(6): a(f'v_min_u32 {v(R+4+k)}, -2, {v(R+4+k)}')
    a(f'buffer_store_dwordx4 {v(R+4,4)}, v1, {SRD}, s24 offen sc1')
    a(f'buffer_store_dword {v(R+8)}, v16, {SRD}, s25 offen sc1\nbuffer_store_dword {v(R+9)}, v16, {SRD}, s25 offen offset:8 sc1')
    a.label('P_next')
    a('v_xor_b32 v13, 0x8000, v13\nv_xor_b32 v14, 0x8000, v14')
    loop_end(a, 'P_loop')

def role_O(a, opts):
    a.label('role_O')
    a('s_cmp_lt_u32 s27, 14\ns_cselect_b32 s28, 0, 14\ns_cselect_b32 s21, 0, 1\ns_sub_u32 s22, s27, s28')
    a('s_sub_u32 s26, s26, 6\ns_lshl_b32 s26, s26, 1\ns_add_u32 s21, s21, s26')
    a('v_lshlrev_b32 v1, 4, v0\nv_lshrrev_b32 v3, 4, v0\nv_and_b32 v4, 15, v0\nv_and_b32 v2, 31, v0\nv_lshlrev_b32 v2, 4, v2')
    a('s_and_b32 s28, s16, 1\ns_lshr_b32 s29, s16, 1')
    a('s_lshl_b32 s30, s28, 4\nv_add_u32 v7, s30, v4\nv_mul_u32_u24 v7, 896, v7\nv_lshl_add_u32 v7, v3, 3, v7')
    a('s_lshl_b32 s30, s22, 6\ns_lshl_b32 s31, s29, 5\ns_add_u32 s30, s30, s31\nv_add_u32 v7, s30, v7')
    a('v_lshlrev_b32 v13, 3, v0')
    a('s_lshl_b32 s30, s16, 12\nv_add_u32 v14, s30, v1')
    a('s_lshl_b32 s30, s29, 1\ns_add_u32 s30, s30, s28\ns_lshl_b32 s30, s30, 10\nv_add_u32 v15, s30, v1')
    VQ, GQ, PQ, PMQ, OA = 32, 64, 80, 112, 128
    a.label('O_loop')
    a(f's_lshl_b32 s24, s21, 6\ns_lshl_b32 s25, s16, 4\ns_add_u32 s24, s24, s25\ns_add_u32 s24, s24, {VFLAG}')
    wait_flags(a, 's24', 4, 8)
    a(f's_lshl_b32 s24, s21, 4\ns_lshl_b32 s25, s16, 2\ns_add_u32 s24, s24, s25\ns_mul_i32 s24, s24, {SEGB}\ns_lshl_b32 s25, s22, 11\ns_add_u32 s24, s24, s25\ns_add_u32 s24, s24, {V}')
    for hh in range(4):
        for ct in range(2):
            a(f'buffer_load_dwordx4 {v(VQ + 8*hh + 4*ct, 4)}, v1, {SRD}, s24 offen offset:{1024*ct} sc1')
        a(f's_add_u32 s24, s24, {SEGB}')
    a(f's_mul_i32 s34, s21, {SEGB}')
    a('buffer_load_dwordx2 v[16:17], v7, s[8:11], s34 offen')
    a(f's_lshl_b32 s24, s21, 4\ns_add_u32 s24, s24, {FFLAG}')
    wait_flags(a, 's24', 4, 8)
    a(f's_lshl_b32 s24, s22, 1\ns_add_u32 s24, s24, s29\ns_lshl_b32 s24, s24, 1\ns_add_u32 s24, s24, s28\ns_lshl_b32 s24, s24, 9\ns_add_u32 s24, s24, s34\ns_add_u32 s24, s24, {F}')
    a(f'buffer_load_dwordx2 v[18:19], v13, {SRD}, s24 offen sc1')
    a(f's_mul_i32 s24, s21, {PTS}\ns_add_u32 s24, s24, {PT}\ns_lshl_b32 s25, s16, 11\ns_add_u32 s25, s25, s24\ns_add_u32 s25, s25, 32768')
    a('s_lshl_b32 s33, s16, 13\ns_add_u32 s24, s24, s33\ns_add_u32 s35, s24, 4096')
    a.label('O_poll')
    for hh in range(4):
        for qt in range(2):
            a(f'buffer_load_dwordx4 {v(PQ + 8*hh + 4*qt, 4)}, v1, {SRD}, {"s24" if hh < 2 else "s35"} offen offset:{2048*(hh % 2) + 1024*qt} sc1')
    for Q in range(2):
        for qt in range(2):
            a(f'buffer_load_dwordx4 {v(PMQ + 8*Q + 4*qt, 4)}, v2, {SRD}, s25 offen offset:{1024*Q + 512*qt} sc1')
    a('s_waitcnt vmcnt(0)')
    allmax_chain(a, 8, range(PQ, PQ+48))
    a('v_cmp_eq_u32 vcc, -1, v8\ns_cbranch_vccz O_got')
    timeout(a, 'O_poll', 4)
    a.label('O_got')
    for ct in range(2):
        for qt in range(2):
            d = v(OA + 8*ct + 4*qt, 4)
            for hh in range(4):
                a(f'v_mfma_f32_16x16x32_bf16 {d}, {v(VQ + 8*hh + 4*ct, 4)}, {v(PQ + 8*hh + 4*qt, 4)}, {"0" if hh == 0 else d}')
    a(f's_lshl_b32 s24, s21, 8\ns_lshl_b32 s25, s22, 4\ns_add_u32 s24, s24, s25\ns_lshl_b32 s25, s16, 2\ns_add_u32 s24, s24, s25\ns_add_u32 s24, s24, {GFLAG}')
    wait_flags(a, 's24', 1, 1)
    a(f's_mul_i32 s24, s21, {GSEG}\ns_lshl_b32 s25, s22, 14\ns_add_u32 s24, s24, s25\ns_lshl_b32 s25, s16, 11\ns_add_u32 s24, s24, s25\ns_add_u32 s24, s24, {G}\ns_add_u32 s25, s24, 8192')
    for ct in range(2):
        for Q in range(2):
            a(f'buffer_load_dwordx4 {v(GQ + 8*ct + 4*Q, 4)}, v1, {SRD}, {"s24" if ct == 0 else "s25"} offen offset:{1024*Q} sc1')
    a('s_waitcnt vmcnt(0)')
    for ct in range(2):
        for qt in range(2):
            d = v(OA + 8*ct + 4*qt, 4)
            for Q in range(2):
                a(f'v_mfma_f32_16x16x32_bf16 {d}, {v(GQ + 8*ct + 4*Q, 4)}, {v(PMQ + 8*Q + 4*qt, 4)}, {d}')
    for k in range(4):
        a(f'ds_write_b128 v14, {v(OA + 4*k, 4)} offset:{1024*k}')
    a('v_xor_b32 v14, 0x4000, v14\ns_waitcnt lgkmcnt(0)\ns_barrier')
    for p in range(4):
        a(f'ds_read_b128 {v(VQ + 4*p, 4)}, v15 offset:{4096*p}')
    a('v_xor_b32 v15, 0x4000, v15\ns_mov_b32 s33, 0xffff0000')
    a('v_lshlrev_b32 v20, 16, v16\nv_and_b32 v21, s33, v16\nv_lshlrev_b32 v22, 16, v17\nv_and_b32 v23, s33, v17')
    a('v_lshlrev_b32 v24, 16, v18\nv_and_b32 v25, s33, v18\nv_lshlrev_b32 v26, 16, v19\nv_and_b32 v27, s33, v19')
    for r in range(4): a(f'v_add_f32 {v(20+r)}, {v(20+r)}, {v(24+r)}')
    a('s_waitcnt lgkmcnt(0)')
    for r in range(4):
        a(f'v_add_f32 {v(VQ+r)}, {v(VQ+r)}, {v(VQ+4+r)}\nv_add_f32 {v(VQ+8+r)}, {v(VQ+8+r)}, {v(VQ+12+r)}\nv_add_f32 {v(VQ+r)}, {v(VQ+r)}, {v(VQ+8+r)}\nv_add_f32 {v(20+r)}, {v(20+r)}, {v(VQ+r)}')
    a('v_cvt_pk_bf16_f32 v28, v20, v21\nv_cvt_pk_bf16_f32 v29, v22, v23')
    a('buffer_store_dwordx2 v[28:29], v7, s[12:15], s34 offen')
    loop_end(a, 'O_loop')
```

```python
import sys, importlib
sys.path.insert(0, 'gen')
from asmlib import *
import prep
NAME = 'parallel_sum__memory_aug_recurrent_mem_tr__dense_activation_silu__prompt'
def kd(name, vg, off):
    return f'''.p2align 6
.amdhsa_kernel {name}
  .amdhsa_next_free_vgpr {vg}
  .amdhsa_next_free_sgpr 102
  .amdhsa_accum_offset {off}
  .amdhsa_group_segment_fixed_size 0
  .amdhsa_kernarg_size 104
  .amdhsa_user_sgpr_count 2
  .amdhsa_user_sgpr_kernarg_segment_ptr 1
  .amdhsa_system_sgpr_workgroup_id_x 1
.end_amdhsa_kernel'''
def build(opts=None, with_main=True):
    opts = opts or {}
    ref = open(f'cdna_kernels/{NAME}.s.ref').read().split('\n')
    head = [l for l in ref if l.startswith(';') and '@launch' not in l and 'Override' not in l and 'grid=ceil' not in l]
    head.append(f'; @launch kernel=prep_kernel grid=(256,1,1) block=(512,1,1) lds={prep.PREP_LDS}')
    a = Asm()
    prep.gen_prep(a, 'prep_kernel')
    kds = [kd('prep_kernel', 176, 176)]
    if with_main:
        import mainrole
        head.append(f'; @launch kernel=main_kernel grid=(256,1,1) block=(256,1,1) lds={mainrole.MAIN_LDS}')
        mainrole.gen_main(a, 'main_kernel', opts)
        kds.append(kd('main_kernel', 512, 256))
        head += mainrole.HEADER
    body = fix_hazards(a.lines)
    txt = '\n'.join(head) + '\n.amdgcn_target "amdgcn-amd-amdhsa--gfx950"\n.text\n'
    txt += '\n'.join(('' if (l.endswith(':') or l.startswith('.')) else '    ') + l for l in body)
    txt += '\n.section .rodata,"a"\n' + '\n'.join(kds) + '\n'
    return txt
if __name__ == '__main__':
    out = sys.argv[1] if len(sys.argv) > 1 else f'cdna_kernels/{NAME}.s'
    opts = dict(kv.split('=') for kv in sys.argv[2:])
    opts = {k: int(x) for k, x in opts.items()}
    open(out, 'w').write(build(opts, with_main=not opts.get('preponly')))
```

```python
from asmlib import *
from layout import *
from prep import srd
import workers, team

MAIN_LDS = 126976
HEADER = []
SRD = 's[4:7]'

def gen_main(a, name, opts):
    a(f'.globl {name}\n.p2align 8\n.type {name},@function')
    a.label(name)
    a('s_cmp_ge_u32 s2, 256\ns_cbranch_scc1 main_end')
    a('s_load_dwordx2 s[20:21], s[0:1], 0\ns_load_dwordx2 s[22:23], s[0:1], 80\ns_load_dwordx2 s[24:25], s[0:1], 96')
    if opts.get('stamp'):
        a('s_memrealtime s[94:95]')
    a('v_lshrrev_b32 v1, 6, v0\nv_and_b32 v0, 63, v0')
    a('v_readfirstlane_b32 s16, v1')
    a('s_getreg_b32 s26, hwreg(HW_REG_XCC_ID)\ns_and_b32 s26, s26, 7')
    if opts.get('fakexcc'):
        a('s_mul_i32 s26, s2, 9363\ns_lshr_b32 s26, s26, 16\ns_mul_i32 s26, s26, 7\ns_sub_u32 s26, s2, s26\ns_add_u32 s26, s26, 1')
        a('s_cmp_lt_u32 s2, 10\ns_cselect_b32 s26, 0, s26')
    a(f's_mov_b32 s18, {1 << 21}')
    a('s_waitcnt lgkmcnt(0)')
    srd(a, 4, 24, WS_BYTES)
    srd(a, 8, 20, 1835008)
    srd(a, 12, 22, 1835008)
    a('s_cmp_eq_u32 s16, 0\ns_cbranch_scc0 role_wait')
    a(f'v_mov_b32 v2, 1\nv_mov_b32 v3, 0\ns_lshl_b32 s27, s26, 8\ns_add_u32 s27, s27, {CNT}')
    a('s_mov_b64 exec, 1')
    a(f'buffer_atomic_add v2, v3, {SRD}, s27 offen sc0 sc1')
    a('s_waitcnt vmcnt(0)\nv_readfirstlane_b32 s28, v2\ns_mov_b64 exec, -1')
    a('s_lshl_b32 s17, s26, 5\ns_add_u32 s17, s17, s28')
    a('s_cmp_lt_u32 s28, 32\ns_cbranch_scc1 role_have')
    a(f'v_mov_b32 v2, 1\ns_mov_b32 s27, {CNT + 8*256}\ns_mov_b64 exec, 1')
    a(f'buffer_atomic_add v2, v3, {SRD}, s27 offen sc0 sc1')
    a('s_waitcnt vmcnt(0)\nv_readfirstlane_b32 s28, v2\ns_mov_b64 exec, -1')
    a.label('role_ovf')
    read_counters(a)
    a('s_cmp_ge_u32 s38, 256\ns_cbranch_scc1 role_pick')
    a('s_sub_u32 s18, s18, 1\ns_cbranch_scc1 main_end\ns_sleep 4\ns_branch role_ovf')
    a.label('role_pick')
    for x in range(8):
        a(f's_min_u32 s29, s{30+x}, 32\ns_add_u32 s17, s29, {32*x}\ns_add_u32 s17, s17, s28\ns_sub_u32 s29, 32, s29')
        a('s_cmp_lt_u32 s28, s29\ns_cbranch_scc1 role_have\ns_sub_u32 s28, s28, s29')
    a.label('role_have')
    a('v_mov_b32 v2, s17\nv_mov_b32 v3, 0\nds_write_b32 v3, v2\ns_waitcnt lgkmcnt(0)')
    a.label('role_wait')
    a('s_barrier\nv_mov_b32 v3, 0\nds_read_b32 v2, v3\ns_waitcnt lgkmcnt(0)\nv_readfirstlane_b32 s17, v2\ns_barrier')
    a('s_lshr_b32 s26, s17, 5\ns_and_b32 s27, s17, 31')
    a('s_cmp_lt_u32 s17, 16\ns_cbranch_scc1 role_A')
    a('s_cmp_lt_u32 s17, 30\ns_cbranch_scc1 role_B')
    a('s_cmp_eq_u32 s17, 30\ns_cbranch_scc1 role_R')
    a('s_cmp_eq_u32 s17, 31\ns_cbranch_scc1 role_L')
    a('s_cmp_lt_u32 s17, 96\ns_cbranch_scc1 role_V')
    a('s_cmp_lt_u32 s17, 160\ns_cbranch_scc1 role_P')
    a('s_cmp_lt_u32 s17, 176\ns_cbranch_scc1 role_H')
    a('s_cmp_lt_u32 s17, 192\ns_cbranch_scc1 role_F')
    a('s_cmp_lt_u32 s27, 28\ns_cbranch_scc1 role_O')
    a.label('main_end')
    a('s_endpgm')
    team.role_A(a, opts)
    team.role_B(a, opts)
    team.role_R(a, opts)
    team.role_L(a, opts)
    a.label('main_end2')
    a('s_endpgm')
    workers.role_V(a, opts)
    workers.role_P(a, opts)
    workers.role_H(a, opts)
    workers.role_F(a, opts)
    workers.role_O(a, opts)

def read_counters(a, d=2, t=3):
    a(f'v_and_b32 v{t}, 7, v0\nv_lshlrev_b32 v{t}, 8, v{t}\ns_mov_b32 s39, {CNT}')
    a(f'buffer_load_dword v{d}, v{t}, {SRD}, s39 offen sc1\ns_waitcnt vmcnt(0)')
    for x in range(8):
        a(f'v_readlane_b32 s{30+x}, v{d}, {x}')
    a('s_add_u32 s38, s30, s31')
    for x in range(2, 8):
        a(f's_add_u32 s38, s38, s{30+x}')
```

```python
from asmlib import *
from layout import *
from workers import allmax_chain, CEXP
SRD = 's[4:7]'
END = 'main_end2'
SMF = 'v_smfmac_f32_16x16x64_bf16'
DPPM = 'row_mask:0xf bank_mask:0xf'

def timeout(a, lab):
    a(f's_sub_u32 s18, s18, 1\ns_cbranch_scc0 {lab}\ns_branch {END}')

def find_same(a, tag, stamp=0):
    import mainrole
    a.label(f'{tag}_same')
    mainrole.read_counters(a, 116, 117)
    a(f's_mov_b32 s19, 1\ns_cmp_ge_u32 s30, 32\ns_cbranch_scc1 {tag}_samed')
    a(f's_mov_b32 s19, 0\ns_cmp_ge_u32 s38, 256\ns_cbranch_scc1 {tag}_samed')
    timeout(a, f'{tag}_same')
    a.label(f'{tag}_samed')
    if stamp: a('s_memrealtime s[98:99]\ns_waitcnt lgkmcnt(0)')

class Stamps:
    def __init__(self, a, opts): self.a = a; self.on = opts.get('stamp'); self.n = 0
    def __call__(self):
        if self.on:
            self.a(f's_memtime s[{64+2*self.n}:{65+2*self.n}]'); self.n += 1
            assert self.n <= 14
    def flush(self, t):
        if self.on:
            a = self.a
            a('s_memtime s[92:93]\ns_memrealtime s[96:97]\ns_waitcnt lgkmcnt(0)\ns_mov_b32 s90, s18')
            for k in range(16): a(f'v_writelane_b32 {v(t)}, s{64+2*k if k < 15 else 96}, {k}')
            a(f's_lshl_b32 s92, s17, 2\ns_add_u32 s92, s92, s16\ns_lshl_b32 s92, s92, 6\ns_add_u32 s92, s92, s21\ns_lshl_b32 s92, s92, 6\ns_add_u32 s92, s92, {DBG}')
            a(f'v_lshlrev_b32 {v(t+1)}, 2, v0\ns_mov_b64 exec, 0xffff\nbuffer_store_dword {v(t)}, {v(t+1)}, {SRD}, s92 offen\ns_mov_b64 exec, -1')

def lane_parts(a, g, n):
    a(f'v_lshrrev_b32 {v(g)}, 4, v0\nv_and_b32 {v(n)}, 15, v0')

def idx_reg(a, d, n):
    a(f'v_mov_b32 {v(d)}, 0x4444\nv_mov_b32 v118, 0xeeee\nv_cmp_gt_u32 vcc, 8, {v(n)}\nv_cndmask_b32 {v(d)}, v118, {v(d)}, vcc')

def poll_issue(a, quads, addrs):
    for q, (va, so, off) in zip(quads, addrs):
        a(f'buffer_load_dwordx4 {v(q,4)}, {v(va)}, {SRD}, {so} offen offset:{off} sc1')

def poll(a, lab, quads, addrs, t, ahead=0):
    a.label(lab)
    poll_issue(a, quads, addrs)
    a(f's_sub_u32 s18, s18, 1\ns_cbranch_scc1 {END}')
    for i, q in enumerate(quads):
        a(f's_waitcnt vmcnt({len(quads)*(1 + ahead) - 1 - i})')
        if i == 0:
            a(f'v_max3_u32 {v(t)}, {v(q)}, {v(q+1)}, {v(q+2)}')
        else:
            a(f'v_max3_u32 {v(t)}, {v(t)}, {v(pend)}, {v(q)}\nv_max3_u32 {v(t)}, {v(t)}, {v(q+1)}, {v(q+2)}')
        pend = q + 3
    a(f'v_max_u32 {v(t)}, {v(t)}, {v(pend)}')
    a(f'v_cmp_eq_u32 vcc, -1, {v(t)}\ns_cbranch_vccnz {lab}')

A_STAGE = 32768
A_PART = 40960
A_X = 49152
MQ = [8, 16, 24, 28, 32, 36, 40]
TA, SA, SACC, SEL, SEL2, IDX, SB = 44, 88, 96, 108, 112, 114, 120
VX0, VX1, VSW, VSR, VSR2, VPM, VSB, VPF, VPS = 72, 73, 74, 75, 76, 77, 78, 79, 80
SBLK = 40

def a_op(k, t):
    if k == 0 and t < 4: return v(SB + 8*t, 8)
    q = 7*k + t - 4
    return acc(8*q, 8) if q < 32 else v(152 + 8*(q - 32), 8)
def a_quad(k, t, Q):
    q = 7*k + t - 4
    return acc(8*q + 4*Q, 4) if q < 32 else v(152 + 8*(q - 32) + 4*Q, 4)

def role_A(a, opts):
    st = Stamps(a, opts)
    a.label('role_A')
    a('s_lshr_b32 s28, s16, 1\ns_mul_i32 s28, s28, 7\ns_and_b32 s29, s16, 1')
    ev = [0, 1, 2, 3] + list(range(4, 14))
    od = [5, 6, 4, 3] + list(range(7, 17))
    for i in range(14):
        a(f's_cmp_eq_u32 s29, 0\ns_cselect_b32 s30, {ev[i]}, {od[i]}\ns_add_u32 s30, s30, s28')
        a(f's_sub_u32 s31, s30, 14\ns_cselect_b32 s{SBLK+i}, s30, s31')
    G, N, T = 81, 82, 83
    lane_parts(a, G, N)
    a(f'v_and_b32 {v(T)}, 4, {v(N)}\nv_lshlrev_b32 {v(T)}, 1, {v(T)}\nv_and_b32 {v(T+1)}, 2, {v(N)}\nv_lshl_add_u32 {v(T)}, {v(T+1)}, 1, {v(T)}')
    a(f'v_lshrrev_b32 {v(T+1)}, 3, {v(N)}\nv_lshl_add_u32 {v(T)}, {v(T+1)}, 1, {v(T)}\nv_and_b32 {v(T+1)}, 1, {v(N)}\nv_add_u32 {v(T)}, {v(T)}, {v(T+1)}')
    a(f'v_and_b32 {v(T+1)}, 1, {v(G)}\nv_lshlrev_b32 {v(T+2)}, 8, {v(T+1)}\nv_lshl_add_u32 {v(T)}, {v(T)}, 4, {v(T+2)}')
    a(f'v_cmp_eq_u32 s[56:57], 1, {v(T+1)}\nv_cmp_lt_u32 s[58:59], 31, v0')
    a(f's_mul_i32 s20, s17, {MATB}')
    for t in range(6):
        a(f's_lshl_b32 s30, s{SBLK + t//2}, 1\ns_add_u32 s30, s30, {t % 2}\ns_mul_i32 s30, s30, {TILEB}\ns_add_u32 s{64+t}, s30, s20')
    a(f's_lshl_b32 s30, s{SBLK+3}, 1\ns_add_u32 s30, s30, s29\ns_mul_i32 s30, s30, {TILEB}\ns_add_u32 s70, s30, s20')
    a('s_lshl_b32 s35, s16, 13')
    for k in range(7):
        w = 8 + k
        a(f'v_mov_b32 {v(w)}, s{SBLK+2*k}\nv_mov_b32 {v(T+3)}, s{SBLK+2*k+1}\nv_cndmask_b32 {v(w)}, {v(w)}, {v(T+3)}, s[58:59]\nv_lshl_add_u32 {v(w)}, {v(w)}, 10, {v(T)}')
        for t in range(7):
            for Q in range(2):
                if k == 0 and t < 4:
                    a(f's_add_u32 m0, s35, {2048*t + 1024*Q - 512*Q}')
                    a(f'buffer_load_dwordx4 {v(w)}, {SRD}, s{64+t} offen offset:{512*Q} lds')
                else:
                    a(f'buffer_load_dwordx4 {a_quad(k,t,Q)}, {v(w)}, {SRD}, s{64+t} offen offset:{512*Q}')
    a(f'v_lshrrev_b32 {v(T+1)}, 1, {v(G)}\nv_lshlrev_b32 {v(T+2)}, 4, {v(N)}\nv_lshl_add_u32 {v(T)}, {v(T+1)}, 8, {v(T+2)}')
    a(f'v_lshl_add_u32 {v(T+2)}, {v(T+1)}, 10, {v(T+2)}')
    for k in range(7):
        a(f'v_mov_b32 {v(1+k)}, s{SBLK+2*k}\nv_mov_b32 {v(T+3)}, s{SBLK+2*k+1}\nv_cndmask_b32 {v(T+3)}, {v(1+k)}, {v(T+3)}, s[56:57]')
        a(f'v_lshl_add_u32 {v(1+k)}, {v(T+3)}, 9, {v(T)}')
        if k < 2: a(f'v_lshl_add_u32 {v(VX0+k)}, {v(T+3)}, 11, {v(T+2)}')
    idx_reg(a, IDX, N)
    a(f'v_lshrrev_b32 {v(T)}, 2, {v(N)}\nv_xor_b32 {v(T)}, {v(T)}, {v(G)}\nv_and_b32 {v(T)}, 1, {v(T)}')
    a(f'v_and_b32 {v(T+1)}, 1, {v(N)}\nv_lshlrev_b32 {v(T+1)}, 4, {v(T+1)}\nv_mov_b32 {v(T+2)}, 0x3f80\nv_lshlrev_b32 {v(T+1)}, {v(T+1)}, {v(T+2)}')
    a(f'v_cmp_eq_u32 vcc, 0, {v(T)}\nv_cndmask_b32 {v(T+1)}, 0, {v(T+1)}, vcc')
    a(f'v_lshrrev_b32 {v(T)}, 3, {v(N)}\nv_bfe_u32 {v(T+2)}, {v(N)}, 1, 1\nv_lshl_add_u32 {v(T)}, {v(T)}, 1, {v(T+2)}')
    for d in range(4):
        a(f'v_cmp_eq_u32 vcc, {d}, {v(T)}\nv_cndmask_b32 {v(SEL+d)}, 0, {v(T+1)}, vcc')
    a('s_cmp_eq_u32 s29, 0\ns_cselect_b64 vcc, -1, 0')
    a(f'v_cndmask_b32 {v(SEL2)}, {v(SEL+2)}, {v(SEL)}, vcc\nv_cndmask_b32 {v(SEL2+1)}, {v(SEL+3)}, {v(SEL+1)}, vcc')
    a(f'v_and_b32 {v(T)}, 1, {v(G)}\nv_lshrrev_b32 {v(T+1)}, 1, {v(G)}\nv_lshl_add_u32 {v(T)}, {v(T)}, 2, {v(T+1)}\nv_mul_u32_u24 {v(T)}, 208, {v(T)}')
    a(f's_mul_i32 s30, s16, 1664\ns_add_u32 s30, s30, {A_PART}\nv_lshl_add_u32 {v(T)}, {v(N)}, 2, {v(T)}\nv_add_u32 {v(VSW)}, s30, {v(T)}')
    a(f'v_and_b32 {v(T)}, 7, v0\nv_mul_u32_u24 {v(T)}, 208, {v(T)}\nv_add_u32 {v(T)}, s30, {v(T)}\nv_mov_b32 v24, 0xf149f2ca\nv_mov_b32 v25, v24')
    a(f'ds_write_b64 {v(T)}, v[24:25] offset:192')
    a(f'v_and_b32 {v(T)}, 31, v0\nv_lshrrev_b32 {v(T+1)}, 5, v0\ns_lshl_b32 s30, s16, 1\nv_add_u32 {v(T+1)}, s30, {v(T+1)}')
    a(f'v_and_b32 {v(T+2)}, 1, {v(T)}\nv_lshlrev_b32 {v(T+2)}, 4, {v(T+2)}\nv_and_b32 {v(T+3)}, 8, {v(T)}\nv_add_u32 {v(T+2)}, {v(T+2)}, {v(T+3)}')
    a(f'v_and_b32 {v(T+3)}, 2, {v(T)}\nv_lshl_add_u32 {v(T+2)}, {v(T+3)}, 1, {v(T+2)}\nv_bfe_u32 {v(T+3)}, {v(T)}, 2, 1\nv_lshl_add_u32 {v(T+2)}, {v(T+3)}, 1, {v(T+2)}')
    a(f'v_lshlrev_b32 {v(T+3)}, 1, {v(T)}\nv_cmp_gt_u32 vcc, 16, {v(T)}\nv_cndmask_b32 {v(T+2)}, {v(T+3)}, {v(T+2)}, vcc')
    a(f'v_cmp_gt_u32 s[60:61], 20, {v(T)}\nv_cndmask_b32 {v(T+2)}, 48, {v(T+2)}, s[60:61]')
    a(f'v_mul_u32_u24 {v(T+3)}, 208, {v(T+1)}\nv_lshl_add_u32 {v(T+2)}, {v(T+2)}, 2, {v(T+3)}\nv_add_u32 {v(VSR)}, {A_PART}, {v(T+2)}\nv_add_u32 {v(VSR2)}, 3328, {v(VSR)}')
    a(f'v_lshrrev_b32 {v(T+2)}, 2, {v(T)}\nv_lshlrev_b32 {v(T+2)}, 7, {v(T+2)}\nv_lshl_add_u32 {v(T+2)}, {v(T+1)}, 4, {v(T+2)}\nv_and_b32 {v(T+3)}, 3, {v(T)}')
    a(f'v_lshl_add_u32 {v(T+2)}, {v(T+3)}, 2, {v(T+2)}\nv_bfrev_b32 {v(T+3)}, 1\nv_cndmask_b32 {v(VPM)}, {v(T+3)}, {v(T+2)}, s[60:61]')
    a(f'v_lshlrev_b32 {v(VSB)}, 4, v0\nv_add_u32 {v(VSB)}, s35, {v(VSB)}')
    a(f's_mov_b32 s21, 0\ns_mov_b32 s22, {MM}\ns_mov_b32 s23, {XD}\ns_mul_i32 s24, s17, 640\ns_add_u32 s24, s24, {PM}')
    find_same(a, 'A', opts.get('stamp'))
    a('s_lshl_b32 s35, s16, 13')
    a('.p2align 6')
    a.label('A_loop')
    xl = [(b, kt, Q) for b in range(2) for kt in range(2) for Q in range(2)]
    def xdma(lo, hi):
        for x, (b, kt, Q) in list(enumerate(xl))[lo:hi]:
            a(f's_add_u32 m0, s35, {A_X + 1024*x - 512*Q - 256*kt}')
            a(f'buffer_load_dwordx4 {v(VX0+b)}, {SRD}, s23 offen offset:{512*Q + 256*kt} lds')
    def sbl():
        for t in range(4):
            for Q in range(2):
                a(f'ds_read_b128 {v(SB + 8*t + 4*Q, 4)}, {v(VSB)} offset:{2048*t + 1024*Q}')
    zr = [SACC + r for r in range(12)] + [TA + r for r in range(28)]
    def zero(lo, hi):
        for r in zr[lo:hi]: a(f'v_mov_b32 {v(r)}, 0')
    pa = ([MQ[0], MQ[1]], [(1, 's22', 0), (2, 's22', 0)])
    AH = 1
    mode = opts.get('am', 0)
    if mode == 0:
        zero(0, 13); xdma(0, 8); sbl(); a('s_waitcnt vmcnt(0) lgkmcnt(0)'); poll_issue(a, *pa); zero(13, 40)
    elif mode == 1:
        sbl(); zero(0, 40); a('s_waitcnt vmcnt(0) lgkmcnt(0)'); xdma(0, 4); poll_issue(a, *pa); xdma(4, 8)
    elif mode == 2:
        sbl(); zero(0, 13); a('s_waitcnt vmcnt(0) lgkmcnt(0)'); xdma(0, 8); a('s_waitcnt vmcnt(0)'); poll_issue(a, *pa); zero(13, 40)
    elif mode == 3:
        sbl(); zero(0, 40); a('s_waitcnt vmcnt(0) lgkmcnt(0)'); xdma(0, 6); poll_issue(a, *pa); xdma(6, 8)
    elif mode == 4:
        sbl(); zero(0, 40); a('s_waitcnt vmcnt(0) lgkmcnt(0)'); xdma(0, 8); poll_issue(a, *pa)
    st()
    poll(a, 'A_poll', *pa, T, AH)
    st()
    def T_(t, k): a(f'{SMF} {v(TA+4*t,4)}, {v(MQ[k],4)}, {a_op(k,t)}, {v(IDX)}')
    for t in range(7):
        T_(t, 0)
        if t < 2: a(f'ds_write_b128 {v(1+t)}, {v(MQ[t],4)} offset:{A_STAGE}')
    st()
    a('s_waitcnt lgkmcnt(0)\ns_barrier')
    st()
    for t in range(7):
        T_(t, 1)
        if t < 5: a(f'ds_read_b128 {v(MQ[2+t],4)}, {v(3+t)} offset:{A_STAGE}')
    def cvt(d, x): a(f'v_cvt_pk_bf16_f32 {v(d)}, {v(x)}, {v(x+1)}\nv_cvt_pk_bf16_f32 {v(d+1)}, {v(x+2)}, {v(x+3)}')
    def tr(d, x): a(f'v_mfma_f32_16x16x32_bf16 {v(d,4)}, {v(x,4)}, {v(SEL,4)}, 0')
    def S_(b, kg): a(f'{SMF} {v(SACC+4*kg,4)}, {v(SA+4*b,4)}, {v(8+8*b,8) if kg == 2 else v(SB+16*b+8*kg,8)}, {v(IDX)}')
    st()
    fill = [f'ds_read_b128 {v(SB + 4*x, 4)}, {v(VSB)} offset:{A_X + 1024*x}' for x in range(8)]
    fill += [f'v_mov_b32_dpp {v(12+t)}, {v(8+t)} row_ror:8 {DPPM}' for t in range(4)] + [f'v_mov_b32_dpp {v(20+t)}, {v(16+t)} row_ror:8 {DPPM}' for t in range(4)]
    for k in range(2, 7):
        if k < 4: a(f's_waitcnt lgkmcnt({(4, 0)[k-2]})')
        for t in range(4):
            T_(t, k)
            if k >= 3: a(fill.pop(0))
    st()
    CX, CY, CZ, CS = 80, 84, 116, 80
    T_(4,2); T_(5,2); T_(4,3); T_(5,3); T_(4,4); cvt(CX, TA); T_(5,4); cvt(CX+2, TA+4); T_(4,5); cvt(CY, TA+8); T_(5,5); cvt(CY+2, TA+12)
    tr(TA, CX); T_(4,6); T_(5,6); tr(TA+4, CY)
    T_(6,2); T_(6,3); T_(6,4); T_(6,5); T_(6,6)
    st()
    cvt(SA, TA); cvt(CZ, TA+16); cvt(CZ+2, TA+20); cvt(SA+2, TA+4)
    tr(TA+8, CZ)
    cvt(CS, TA+24)
    a('s_waitcnt lgkmcnt(0)')
    S_(0, 2)
    a(f'v_mfma_f32_16x16x16_bf16 {v(TA+12,4)}, {v(CS,2)}, {v(SEL2,2)}, 0')
    S_(0, 0); S_(0, 1)
    st()
    cvt(SA+4, TA+8); cvt(SA+6, TA+12)
    S_(1, 2); S_(1, 0); S_(1, 1)
    st()
    for kg in (2, 0, 1):
        q = SACC + 4*kg
        a(f'v_permlane32_swap_b32 {v(q)}, {v(q+1)}\nv_permlane32_swap_b32 {v(q+2)}, {v(q+3)}')
        a(f'v_add_f32 {v(q)}, {v(q)}, {v(q+1)}\nv_add_f32 {v(q+2)}, {v(q+2)}, {v(q+3)}')
        a(f'ds_write2_b32 {v(VSW)}, {v(q)}, {v(q+2)} offset0:{16*kg} offset1:{104 + 16*kg}')
    a('s_cmp_eq_u32 s19, 0\ns_waitcnt lgkmcnt(0)\ns_barrier')
    st()
    for w in range(4): a(f'ds_read_b64 {v(24+2*w,2)}, {v(VSR)} offset:{1664*w}')
    a('s_waitcnt lgkmcnt(2)\nv_add_f32 v24, v24, v26\nv_add_f32 v25, v25, v27\ns_waitcnt lgkmcnt(0)')
    a('v_add_f32 v28, v28, v30\nv_add_f32 v29, v29, v31\nv_add_f32 v24, v24, v28\nv_add_f32 v25, v25, v29')
    def red(x, op):
        for r in (8, 4, 2, 1): a(f'{op}_dpp {v(x)}, {v(x)}, {v(x)} row_ror:{r} {DPPM}')
        a(f'v_mov_b32 {v(x+1)}, {v(x)}\nv_permlane16_swap_b32 {v(x)}, {v(x+1)}\n{op} {v(x)}, {v(x)}, {v(x+1)}')
    st()
    a('v_max_f32 v26, v24, v25')
    red(26, 'v_max_f32')
    a('v_sub_f32 v24, v24, v26\nv_sub_f32 v25, v25, v26\nv_exp_f32 v24, v24\nv_exp_f32 v25, v25')
    a('v_add_f32 v26, v24, v25')
    red(26, 'v_add_f32')
    a('v_rcp_f32 v26, v26\nv_mul_f32 v24, v24, v26\nv_mul_f32 v25, v25, v26\nv_cvt_pk_bf16_f32 v24, v24, v25\nv_min_u32 v24, -2, v24')
    a('s_cbranch_scc1 A_far')
    a(f'buffer_store_dword v24, {v(VPM)}, {SRD}, s24 offen')
    a.label('A_back')
    if opts.get('bar', 1): a('s_barrier')
    st(); st.flush(116)
    a(f's_add_u32 s21, s21, 1\ns_add_u32 s22, s22, {MMS}\ns_add_u32 s23, s23, {SEGB}\ns_add_u32 s24, s24, {PMS}')
    a('s_cmp_lt_u32 s21, 63\ns_cbranch_scc1 A_loop\ns_endpgm')
    a.label('A_far')
    a(f'buffer_store_dword v24, {v(VPM)}, {SRD}, s24 offen sc1\ns_branch A_back')

B_STAGE = 114688
B_PART = 121856
GB = 240
GA, VT, PQ, OA, BIDX, WB = 36, 68, 100, 112, 120, 144
VL16, VPT, VPMM, VOW, VOR, VOR2, VMI, VMX, VWL, VVF = 121, 122, 123, 124, 125, 126, 127, 128, 129, 130

def b_reg(k, hh, ct):
    if hh == 3: return None
    q = 6*k + 2*hh + ct
    return 256 + 8*q if q < 32 else 160 + 8*(q - 32)
def rg(r, n): return acc(r - 256, n) if r >= 256 else v(r, n)

def role_B(a, opts):
    st = Stamps(a, opts)
    a.label('role_B')
    a('s_sub_u32 s20, s17, 16')
    G, N, T = 131, 132, 133
    lane_parts(a, G, N)
    for k in range(7):
        a(f's_lshl_b32 s30, s16, 1\ns_add_u32 s30, s30, {k}\ns_sub_u32 s31, s30, 7\ns_cselect_b32 s{40+k}, s30, s31')
    a(f'v_lshrrev_b32 {v(T)}, 1, {v(G)}\nv_and_b32 {v(T+1)}, 1, {v(G)}\nv_lshlrev_b32 {v(T+2)}, 4, {v(N)}')
    a(f'v_lshl_add_u32 {v(T+3)}, {v(T)}, 10, {v(T+2)}\nv_lshl_add_u32 {v(T+3)}, {v(T+1)}, 8, {v(T+3)}')
    a(f's_lshl_b32 s30, s16, 2\ns_add_u32 s30, s30, 16\ns_mul_i32 s30, s30, {MATB}\ns_mul_i32 s31, s20, {2*TILEB}\ns_add_u32 s30, s30, s31')
    for hh in range(4):
        for ct in range(2): a(f's_add_u32 s{64 + 2*hh + ct}, s30, {hh*MATB + ct*TILEB}')
    a('s_mul_i32 s35, s16, 28672')
    for k in range(7):
        a(f's_lshl_b32 s31, s{40+k}, 11')
        for hh in range(4):
            for ct in range(2):
                a(f's_add_u32 s33, s31, s{64 + 2*hh + ct}')
                r = b_reg(k, hh, ct)
                for Q in range(2):
                    if r is None:
                        a(f's_add_u32 m0, s35, {4096*k + 2048*ct + 1024*Q - 512*Q}')
                        a(f'buffer_load_dwordx4 {v(T+3)}, {SRD}, s33 offen offset:{512*Q} lds')
                    else:
                        a(f'buffer_load_dwordx4 {rg(r + 4*Q, 4)}, {v(T+3)}, {SRD}, s33 offen offset:{512*Q}')
    a(f'v_lshl_add_u32 {v(T+2)}, {v(T)}, 8, {v(T+2)}\nv_lshl_add_u32 {v(T+2)}, {v(T+1)}, 9, {v(T+2)}')
    for k in range(7):
        a(f's_lshl_b32 s31, s{40+k}, 10')
        if k < 2: a(f'v_add_u32 {v(1+k)}, s31, {v(T+2)}\nv_add_u32 {v(138+k)}, {B_STAGE}, {v(1+k)}')
        else: a(f's_add_u32 s31, s31, {B_STAGE}\nv_add_u32 {v(1+k)}, s31, {v(T+2)}')
    a(f'v_and_b32 {v(T+2)}, 7, {v(N)}\nv_lshrrev_b32 {v(T+3)}, 3, {v(N)}')
    a('s_mul_i32 s30, s16, 2560')
    a(f'v_mul_u32_u24 {v(VPT)}, 640, {v(T)}\nv_lshl_add_u32 {v(VPT)}, {v(N)}, 4, {v(VPT)}\nv_lshl_add_u32 {v(VPT)}, {v(T+1)}, 8, {v(VPT)}\nv_add_u32 {v(VPT)}, s30, {v(VPT)}')
    a(f'v_lshl_add_u32 {v(VPMM)}, {v(T)}, 1, {v(T+3)}\nv_mul_u32_u24 {v(VPMM)}, 640, {v(VPMM)}\nv_lshl_add_u32 {v(VPMM)}, {v(T+2)}, 4, {v(VPMM)}\nv_add_u32 {v(VPMM)}, s30, {v(VPMM)}')
    a(f'v_lshlrev_b32 {v(VL16)}, 4, v0\nv_add_u32 {v(VWL)}, s35, {v(VL16)}')
    a(f's_lshl_b32 s30, s16, 10\ns_add_u32 s30, s30, {B_PART}\nv_lshlrev_b32 {v(VOW)}, 2, {v(N)}\nv_lshl_add_u32 {v(VOW)}, {v(T)}, 6, {v(VOW)}\nv_lshl_add_u32 {v(VOW)}, {v(T+1)}, 9, {v(VOW)}\nv_add_u32 {v(VOW)}, s30, {v(VOW)}')
    a(f's_lshl_b32 s30, s16, 1\nv_add_u32 {v(T+1)}, s30, {v(T+1)}')
    a(f'v_lshlrev_b32 {v(VOR)}, 3, {v(N)}\nv_lshl_add_u32 {v(VOR)}, {v(T+1)}, 7, {v(VOR)}\nv_add_u32 {v(VOR)}, {B_PART}, {v(VOR)}')
    a(f's_lshl_b32 s30, s20, 9\nv_lshl_add_u32 {v(T+1)}, {v(T+1)}, 4, s30')
    a(f'v_lshl_add_u32 {v(VMI)}, {v(T+3)}, 8, {v(T+1)}\nv_and_b32 {v(T)}, 1, {v(N)}\nv_lshl_add_u32 {v(VMI)}, {v(T)}, 7, {v(VMI)}\nv_lshrrev_b32 {v(T)}, 1, {v(T+2)}\nv_lshl_add_u32 {v(VMI)}, {v(T)}, 2, {v(VMI)}')
    a(f'v_bfrev_b32 {v(T)}, 1\nv_cmp_gt_u32 vcc, 32, v0\nv_cndmask_b32 {v(VMI)}, {v(T)}, {v(VMI)}, vcc')
    a(f'v_lshlrev_b32 {v(VVF)}, 6, v0')
    idx_reg(a, BIDX, N)
    a(f's_mov_b32 s21, 0\ns_mov_b32 s22, {MM}\ns_mov_b32 s24, {PM}')
    a(f's_lshl_b32 s30, s16, 2\ns_mul_i32 s30, s30, {SEGB}\ns_lshl_b32 s31, s20, 11\ns_add_u32 s30, s30, s31\ns_add_u32 s23, s30, {V}')
    a(f's_lshl_b32 s30, s16, 4\ns_add_u32 s27, s30, {VFLAG}\ns_mov_b64 s[62:63], 0')
    find_same(a, 'B', opts.get('stamp'))
    WBS = (144, 240)
    def wl(k):
        for ct in range(2):
            for Q in range(2):
                a(f'ds_read_b128 {v(WBS[k % 2] + 8*ct + 4*Q, 4)}, {v(VWL)} offset:{4096*k + 2048*ct + 1024*Q}')
    def smf(k, hh, ct):
        r = b_reg(k, hh, ct)
        a(f'{SMF} {v(GA + 16*ct + 4*hh, 4)}, {v(8 + 4*k, 4)}, {rg(r, 8) if r is not None else v(WBS[k % 2] + 8*ct, 8)}, {v(BIDX)}')
    BH = opts.get('bh', 1)
    NE = opts.get('ne', 2)
    pb = ([PQ, PQ+4, PQ+8], [(VPT, 's24', 0), (VPT, 's24', 1280), (VPMM, 's24', 512)])
    mem = []
    for hh in range(4):
        for ct in range(2):
            mem.append(f's_add_u32 s33, s23, {hh*SEGB}\nbuffer_load_dwordx4 {v(VT + 16*(hh//2) + 8*ct + 4*(hh%2), 4)}, {v(VL16)}, {SRD}, s33 offen offset:{1024*ct} sc1')
    if opts.get('nov'): mem = []
    a('.p2align 6')
    a.label('B_loop')
    a('s_bitcmp1_b64 s[62:63], s21\ns_cbranch_scc0 B_vwait')
    a.label('B_vok')
    if not opts.get('zb', 1):
        for x in mem[:NE]: a(x)
    wl(0); wl(1)
    for r in range(32): a(f'v_mov_b32 {v(GA+r)}, 0')
    for r in range(8): a(f'v_mov_b32 {v(OA+r)}, 0')
    if opts.get('zb', 1):
        for x in mem[:NE]: a(x)
    mem = mem[NE:]
    st()
    poll(a, 'B_poll', [8, 12], [(1, 's22', 0), (2, 's22', 0)], T)
    st()
    a('s_waitcnt lgkmcnt(0)')
    smf(0, 3, 0); a('ds_write_b128 v138, v[8:11]'); smf(0, 3, 1); a('ds_write_b128 v139, v[12:15]')
    for hh in range(3):
        for ct in range(2):
            smf(0, hh, ct)
            if ct == 0 and mem: a(mem.pop(0))
    st()
    a('s_waitcnt lgkmcnt(0)\ns_barrier')
    st()
    a(f'ds_read_b128 {v(16, 4)}, v3')
    wl(2)
    for k in range(3, 7): a(f'ds_read_b128 {v(8 + 4*k, 4)}, {v(1+k)}')
    for k in range(1, 7):
        if k in (2, 4): st()
        if k > 1: a(f's_waitcnt lgkmcnt({(8, 4, 4, 4, 0)[k-2]})')
        smf(k, 3, 0); smf(k, 3, 1)
        if k < 5: wl(k + 2)
        if k == 6:
            for x in range(BH): poll_issue(a, *pb)
        for hh in range(3):
            for ct in range(2):
                smf(k, hh, ct)
                if ct == 0 and mem: a(mem.pop(0))
    assert not mem
    for hh in range(4):
        for ct in range(2):
            for jj in range(2):
                b = GA + 16*ct
                a(f'v_cvt_pk_bf16_f32 {v(b + 4*(hh//2) + 2*jj + hh%2)}, {v(b + 4*hh + 2*jj)}, {v(b + 4*hh + 2*jj + 1)}')
    if opts.get('stamp'): a('s_mov_b32 s88, s18')
    st()
    poll(a, 'B_pollp', *pb, T, BH)
    st()
    for pp in range(3):
        for ct in range(2):
            b = v(VT + 16*pp + 8*ct, 8) if pp < 2 else v(GA + 16*ct, 8)
            a(f'{SMF} {v(OA + 4*ct, 4)}, {v(PQ + 4*pp, 4)}, {b}, {v(BIDX)}')
    st()
    a(f's_add_u32 s22, s22, {MMS}\ns_cmp_eq_u32 s19, 0')
    for r in (0, 2):
        a(f'v_permlane32_swap_b32 {v(OA+r)}, {v(OA+4+r)}\nv_permlane32_swap_b32 {v(OA+r+1)}, {v(OA+5+r)}')
        a(f'v_add_f32 {v(OA+r)}, {v(OA+r)}, {v(OA+4+r)}\nv_add_f32 {v(OA+r+1)}, {v(OA+r+1)}, {v(OA+5+r)}')
        a(f'ds_write2_b32 {v(VOW)}, {v(OA+r)}, {v(OA+r+1)} offset0:{32*r} offset1:{32*r + 32}')
    a('s_waitcnt lgkmcnt(0)\ns_barrier')
    st()
    for w in range(4): a(f'ds_read_b64 {v(16+2*w,2)}, {v(VOR)} offset:{1024*w}')
    a('s_waitcnt lgkmcnt(2)\nv_add_f32 v16, v16, v18\nv_add_f32 v17, v17, v19\ns_waitcnt lgkmcnt(0)')
    a('v_add_f32 v20, v20, v22\nv_add_f32 v21, v21, v23\nv_add_f32 v16, v16, v20\nv_add_f32 v17, v17, v21')
    a('v_cvt_pk_bf16_f32 v16, v16, v17\nv_min_u32 v16, -2, v16')
    a('s_cbranch_scc1 B_far')
    a(f'buffer_store_dword v16, {v(VMI)}, {SRD}, s22 offen')
    a.label('B_back')
    if opts.get('bar', 1): a('s_barrier')
    st(); st.flush(142)
    a(f's_add_u32 s21, s21, 1\ns_add_u32 s23, s23, {16*SEGB}\ns_add_u32 s24, s24, {PMS}')
    a('s_cmp_lt_u32 s21, 63\ns_cbranch_scc1 B_loop\ns_endpgm')
    a.label('B_far')
    a(f'buffer_store_dword v16, {v(VMI)}, {SRD}, s22 offen sc1\ns_branch B_back')
    a.label('B_vwait')
    a(f'buffer_load_dwordx4 v[24:27], {v(VVF)}, {SRD}, s27 offen sc1\ns_waitcnt vmcnt(0)')
    a('v_min3_u32 v24, v24, v25, v26\nv_min_u32 v24, v24, v27\nv_cmp_ne_u32 s[62:63], 0, v24\ns_nop 4')
    a('s_bitcmp1_b64 s[62:63], s21\ns_cbranch_scc1 B_vok')
    timeout(a, 'B_vwait')

def role_R(a, opts):
    a.label('role_R')
    a('v_lshlrev_b32 v1, 4, v0\ns_lshl_b32 s20, s16, 11\nv_add_u32 v1, s20, v1\nv_add_u32 v2, 1024, v1')
    a('s_cmp_eq_u32 s16, 3\ns_cselect_b32 s20, 1024, 0\nv_subrev_u32 v2, s20, v2\nv_add_u32 v3, 7168, v1\nv_add_u32 v4, 7168, v2')
    a('v_and_b32 v5, 8, v0\nv_cmp_ne_u32 s[40:41], 0, v5')
    a(f's_mov_b32 s21, 1\ns_mov_b32 s22, {MM + MMS}')
    a(f'v_lshlrev_b32 v6, 7, v0\ns_lshl_b32 s20, s16, 2\ns_mul_i32 s20, s20, {SEGB}\ns_add_u32 s23, s20, {V + 16*SEGB*(1 + opts.get("la", 2))}')
    a.label('R_loop')
    poll(a, 'R_poll', [8, 12], [(1, 's22', 0), (2, 's22', 0)], 5)
    for q, ad in ((8, 3), (12, 4)):
        d = 16 + (q - 8)*2
        a(f'v_cndmask_b32 {v(d+4)}, {v(q+2)}, {v(q)}, s[40:41]\nv_cndmask_b32 {v(d+5)}, {v(q+3)}, {v(q+1)}, s[40:41]')
        a(f'v_mov_b32_dpp {v(d+4)}, {v(d+4)} row_ror:8 {DPPM}\nv_mov_b32_dpp {v(d+5)}, {v(d+5)} row_ror:8 {DPPM}')
        a(f'v_cndmask_b32 {v(d)}, {v(q)}, {v(d+4)}, s[40:41]\nv_cndmask_b32 {v(d+1)}, {v(d+4)}, {v(q+2)}, s[40:41]')
        a(f'v_cndmask_b32 {v(d+2)}, {v(q+1)}, {v(d+5)}, s[40:41]\nv_cndmask_b32 {v(d+3)}, {v(d+5)}, {v(q+3)}, s[40:41]')
        a(f'buffer_store_dwordx4 {v(d,4)}, {v(ad)}, {SRD}, s22 offen sc1')
    if opts.get('nr', 0):
        a(f's_cmp_ge_u32 s21, {63 - opts.get("la", 2)}\ns_cbranch_scc1 R_next')
        for x in range(opts.get('nv', 0), opts.get('nv', 0) + opts.get('nr', 0)):
            a(f's_add_u32 s33, s23, {8192*x}\nbuffer_load_dword v32, v6, {SRD}, s33 offen sc1')
        a.label('R_next')
    a(f's_add_u32 s21, s21, 1\ns_add_u32 s22, s22, {MMS}\ns_add_u32 s23, s23, {16*SEGB}\ns_cmp_lt_u32 s21, 64\ns_cbranch_scc1 R_loop\ns_endpgm')

def role_L(a, opts):
    a.label('role_L')
    AHEAD = opts.get('la', 2)
    NV = opts.get('nv', 0)
    a('s_lshl_b32 s20, s16, 6\nv_add_u32 v1, s20, v0')
    a(f'v_min_u32 v2, 223, v1\nv_lshlrev_b32 v2, 7, v2\nv_add_u32 v2, {XD}, v2')
    a(f'v_lshlrev_b32 v3, 7, v1\nv_add_u32 v4, {PM - 56*128}, v3\nv_add_u32 v3, {MM + MMS}, v3\nv_cmp_gt_u32 vcc, 56, v1\nv_cndmask_b32 v3, v4, v3, vcc')
    a(f'v_mov_b32 v4, {PMS}\nv_mov_b32 v5, {MMS}\nv_cndmask_b32 v4, v4, v5, vcc\nv_bfrev_b32 v5, 1\nv_cmp_gt_u32 vcc, 136, v1\nv_cndmask_b32 v3, v5, v3, vcc\nv_cndmask_b32 v4, 0, v4, vcc')
    a(f'v_lshlrev_b32 v6, 7, v0\ns_lshl_b32 s20, s16, 2\ns_mul_i32 s20, s20, {SEGB}\ns_add_u32 s20, s20, {V}\nv_add_u32 v6, s20, v6\nv_mov_b32 v7, 0')
    a(f's_mov_b32 s21, 0\ns_mov_b32 s22, {MM}\ns_mov_b32 s23, 0')
    a.label('L_loop')
    a(f'buffer_load_dword v8, v2, {SRD}, 0 offen sc1\nbuffer_load_dword v8, v3, {SRD}, 0 offen sc1')
    for x in range(NV):
        a(f's_add_u32 s33, s23, {8192*x}\nbuffer_load_dword v8, v6, {SRD}, s33 offen sc1')
    a(f'v_add_u32 v2, {SEGB}, v2\nv_add_u32 v3, v4, v3\ns_add_u32 s23, s23, {16*SEGB}\ns_add_u32 s21, s21, 1')
    a(f's_cmp_le_u32 s21, {AHEAD}\ns_cbranch_scc1 L_loop\ns_cmp_ge_u32 s21, 63\ns_cbranch_scc1 {END}\ns_add_u32 s22, s22, {MMS}')
    a.label('L_poll')
    a(f'buffer_load_dword v8, v7, {SRD}, s22 offen sc1\ns_sub_u32 s18, s18, 1\ns_cbranch_scc1 {END}\ns_waitcnt vmcnt(0)')
    a('v_cmp_eq_u32 vcc, -1, v8\ns_cbranch_vccz L_loop\ns_sleep 2\ns_branch L_poll')
```

```python
from asmlib import *
from layout import *
SRD = 's[4:7]'
RING = 32
ACC = 64
SK = 40
ST = 56
END = 'main_end2'

def wreg(i, t):
    q = 7*i + t
    return acc(4*q, 4) if q < 64 else v(120 + 4*(q - 64), 4)
def A(t, qt): return ACC + 8*t + 4*qt

def timeout(a, lab, sleep=0):
    a(f's_sub_u32 s18, s18, 1\ns_cbranch_scc1 {END}')
    if sleep: a(f's_sleep {sleep}')
    a(f's_branch {lab}')

def setup(a, paired, tile0):
    a('s_lshr_b32 s28, s16, 1\ns_mul_i32 s28, s28, 7\ns_and_b32 s29, s16, 1')
    for i in range(14):
        a(f's_cmp_eq_u32 s29, 0\ns_cselect_b32 s30, {4+i}, {16-i}\ns_add_u32 s30, s30, s28')
        for _ in range(2):
            a('s_sub_u32 s31, s30, 14\ns_cselect_b32 s30, s30, s31')
        a(f's_lshl_b32 s{SK+i}, s30, 11')
    if paired:
        for p in range(3):
            a(f's_lshr_b32 s{ST+2*p}, s{SK+10+p}, 10\ns_add_u32 s{ST+2*p+1}, s{ST+2*p}, 1')
        a(f's_lshr_b32 s{ST+6}, s{SK+13}, 10\ns_add_u32 s{ST+6}, s{ST+6}, s29')
    else:
        for t in range(7):
            a(f's_mul_i32 s{ST+t}, {tile0}, 7\ns_add_u32 s{ST+t}, s{ST+t}, {t}')
    a('v_lshlrev_b32 v1, 4, v0\nv_lshrrev_b32 v3, 4, v0\nv_and_b32 v4, 15, v0\nv_lshlrev_b32 v2, 9, v3\nv_lshl_add_u32 v2, v4, 4, v2')
    a(f's_mul_i32 s30, s20, {MATB}')
    for t in range(7):
        a(f's_mul_i32 s{64+t}, s{ST+t}, {TILEB}\ns_add_u32 s{64+t}, s{64+t}, s30')
    for i in range(14):
        a(f's_lshr_b32 s31, s{SK+i}, 1')
        for t in range(7):
            a(f's_add_u32 s33, s31, s{64+t}')
            a(f'buffer_load_dwordx4 {wreg(i,t)}, v1, {SRD}, s33 offen')

def gemm(a, tokrows, sbase, flags=''):
    def ld(j):
        a(f's_add_u32 s33, {sbase}, s{SK + j//2}')
        a(f'buffer_load_dwordx4 {v(RING + 4*(j % 8), 4)}, v2, {SRD}, s33 offen offset:{256*(j % 2)} {flags}')
    for j in range(8): ld(j)
    for j in range(28):
        i, qt = divmod(j, 2)
        a(f's_waitcnt vmcnt({min(7, 27 - j)})')
        x = v(RING + 4*(j % 8), 4)
        for t in range(7):
            d = v(A(t, qt), 4)
            c = '0' if i == 0 else d
            if tokrows: a(f'v_mfma_f32_16x16x32_bf16 {d}, {x}, {wreg(i,t)}, {c}')
            else:       a(f'v_mfma_f32_16x16x32_bf16 {d}, {wreg(i,t)}, {x}, {c}')
        if j + 8 < 28: ld(j + 8)

def flag_store(a, soff):
    lab = a.new('noflag')
    a(f's_waitcnt vmcnt(0)\ns_barrier\ns_cmp_eq_u32 s16, 0\ns_cbranch_scc0 {lab}')
    a(f'v_mov_b32 v5, 1\nv_mov_b32 v6, 0\ns_mov_b64 exec, 1\nbuffer_store_dword v5, v6, {SRD}, {soff} offen sc1\ns_mov_b64 exec, -1')
    a.label(lab)

def loop_end(a, lab, step=4):
    a(f's_add_u32 s21, s21, {step}\ns_cmp_lt_u32 s21, 64\ns_cbranch_scc1 {lab}')
    a('s_endpgm')

def pack2(a, d, x, y):
    a(f'v_cvt_pk_bf16_f32 {v(d)}, {v(x)}, {v(x+1)}\nv_cvt_pk_bf16_f32 {v(d+1)}, {v(x+2)}, {v(x+3)}')
    a(f'v_cvt_pk_bf16_f32 {v(d+2)}, {v(y)}, {v(y+1)}\nv_cvt_pk_bf16_f32 {v(d+3)}, {v(y+2)}, {v(y+3)}')

def role_V(a, opts):
    a.label('role_V')
    a('s_sub_u32 s27, s17, 32\ns_lshr_b32 s22, s27, 2\ns_and_b32 s21, s27, 3\ns_add_u32 s20, s22, 16')
    setup(a, False, 's16')
    a.label('V_loop')
    a(f's_mul_i32 s23, s21, {SEGB}\ns_add_u32 s23, s23, {XN}')
    gemm(a, True, 's23')
    a(f's_lshl_b32 s24, s21, 4\ns_add_u32 s24, s24, s22\ns_lshl_b32 s25, s24, 2\ns_add_u32 s25, s25, {VFLAG}')
    a(f's_mul_i32 s24, s24, {SEGB}\ns_add_u32 s24, s24, {V}\ns_mul_i32 s33, s16, 7168\ns_add_u32 s24, s24, s33')
    for t in range(7):
        pack2(a, A(t,0), A(t,0), A(t,1))
        if t == 4: a('s_add_u32 s24, s24, 4096')
        a(f'buffer_store_dwordx4 {v(A(t,0),4)}, v1, {SRD}, s24 offen offset:{1024*(t % 4)} sc1')
    flag_store(a, 's25')
    a('s_add_u32 s21, s21, 4\ns_cmp_lt_u32 s21, 64\ns_cbranch_scc1 V_loop')
    if opts.get('stamp'): a('s_memrealtime s[98:99]\ns_waitcnt lgkmcnt(0)')
    a('s_and_b32 s21, s21, 3\nv_and_b32 v7, 7, v4\nv_lshlrev_b32 v7, 4, v7\nv_lshl_add_u32 v7, v3, 7, v7')
    a('v_lshlrev_b32 v2, 4, v4\nv_lshl_add_u32 v2, v3, 3, v2\nv_bfrev_b32 v5, 1\nv_cmp_gt_u32 vcc, 32, v0\nv_cndmask_b32 v2, v5, v2, vcc')
    for i in range(14): a(f's_lshr_b32 s{SK+i}, s{SK+i}, 2')
    a.label('G_loop')
    a(f's_mul_i32 s23, s21, {MMS}\ns_add_u32 s23, s23, {MM + 7168}')
    a.label('G_wait')
    a(f'buffer_load_dword v8, v7, {SRD}, s23 offen sc1\ns_waitcnt vmcnt(0)\nv_cmp_eq_u32 vcc, -1, v8\ns_cbranch_vccz G_poll')
    timeout(a, 'G_wait', 2)
    a.label('G_poll')
    for i in range(14):
        a(f's_add_u32 s33, s23, s{SK+i}\nbuffer_load_dwordx4 {v(8+4*i,4)}, v7, {SRD}, s33 offen sc1')
    a(f's_sub_u32 s18, s18, 1\ns_cbranch_scc1 {END}\ns_waitcnt vmcnt(0)')
    allmax_chain(a, 92, range(8, 64))
    a('v_cmp_eq_u32 vcc, -1, v92\ns_cbranch_vccnz G_poll')
    for i in range(14):
        for t in range(7):
            d = v(ACC + 4*t, 4)
            a(f'v_mfma_f32_16x16x32_bf16 {d}, {v(8+4*i,4)}, {wreg(i,t)}, {"0" if i == 0 else d}')
    a(f's_lshl_b32 s24, s21, 4\ns_add_u32 s24, s24, s22\ns_lshl_b32 s25, s24, 2\ns_add_u32 s25, s25, {GFLAG}')
    a(f's_mul_i32 s24, s21, {GSEG}\ns_lshl_b32 s33, s22, 8\ns_add_u32 s24, s24, s33\ns_mul_i32 s33, s16, 28672\ns_add_u32 s24, s24, s33\ns_add_u32 s24, s24, {G}')
    for t in range(7):
        d = ACC + 4*t
        a(f'v_cvt_pk_bf16_f32 {v(d)}, {v(d)}, {v(d+1)}\nv_cvt_pk_bf16_f32 {v(d+1)}, {v(d+2)}, {v(d+3)}')
        a(f'buffer_store_dwordx2 {v(d,2)}, v2, {SRD}, s24 offen sc1\ns_add_u32 s24, s24, 4096')
    flag_store(a, 's25')
    loop_end(a, 'G_loop')

def role_H(a, opts):
    a.label('role_H')
    a('s_sub_u32 s27, s17, 160\ns_lshr_b32 s22, s27, 2\ns_and_b32 s21, s27, 3\ns_add_u32 s20, s22, 32')
    setup(a, True, None)
    a('s_lshl_b32 s34, s29, 3\nv_add_u32 v7, s34, v2')
    a.label('H_loop')
    a(f's_mul_i32 s23, s21, {SEGB}\ns_add_u32 s23, s23, {XN}')
    gemm(a, False, 's23')
    a(f's_lshl_b32 s24, s21, 2\ns_add_u32 s24, s24, s22\ns_lshl_b32 s25, s24, 2\ns_add_u32 s25, s25, {HFLAG}')
    a(f's_mul_i32 s24, s24, {SEGB}\ns_add_u32 s24, s24, {H}')
    def silu(q):
        for r in range(4): a(f'v_mul_f32 {v(8+r)}, 0xbfb8aa3b, {v(q+r)}')
        for r in range(4): a(f'v_exp_f32 {v(8+r)}, {v(8+r)}')
        for r in range(4): a(f'v_add_f32 {v(8+r)}, 1.0, {v(8+r)}')
        for r in range(4): a(f'v_rcp_f32 {v(8+r)}, {v(8+r)}')
        for r in range(4): a(f'v_mul_f32 {v(q+r)}, {v(q+r)}, {v(8+r)}')
    for p in range(3):
        a(f's_add_u32 s33, s24, s{SK+10+p}')
        for qt in range(2):
            silu(A(2*p, qt)); silu(A(2*p+1, qt))
            pack2(a, A(2*p,qt), A(2*p,qt), A(2*p+1,qt))
            a(f'buffer_store_dwordx4 {v(A(2*p,qt),4)}, v2, {SRD}, s33 offen offset:{256*qt} sc1')
    a(f's_add_u32 s33, s24, s{SK+13}')
    for qt in range(2):
        q = A(6, qt)
        silu(q)
        a(f'v_cvt_pk_bf16_f32 {v(q)}, {v(q)}, {v(q+1)}\nv_cvt_pk_bf16_f32 {v(q+1)}, {v(q+2)}, {v(q+3)}')
        a(f'buffer_store_dwordx2 {v(q,2)}, v7, {SRD}, s33 offen offset:{256*qt} sc1')
    flag_store(a, 's25')
    loop_end(a, 'H_loop')

def wait_flags(a, soff, n, sleep=2):
    lab = a.new('wf'); done = a.new('wfd')
    a('v_mov_b32 v6, 0')
    a.label(lab)
    if n == 1:
        a(f'buffer_load_dword v8, v6, {SRD}, {soff} offen sc1\ns_waitcnt vmcnt(0)')
    else:
        a(f'buffer_load_dwordx4 v[8:11], v6, {SRD}, {soff} offen sc1\ns_waitcnt vmcnt(0)')
        a('v_min3_u32 v8, v8, v9, v10\nv_min_u32 v8, v8, v11')
    a(f'v_cmp_eq_u32 vcc, 0, v8\ns_cbranch_vccz {done}')
    timeout(a, lab, sleep)
    a.label(done)

def role_F(a, opts):
    a.label('role_F')
    a('s_sub_u32 s27, s17, 176\ns_lshr_b32 s22, s27, 2\ns_and_b32 s21, s27, 3\ns_add_u32 s20, s16, 36')
    setup(a, False, 's22')
    a('s_mul_i32 s34, s16, 14336\nv_add_u32 v7, s34, v1')
    a('s_lshl_b32 s34, s16, 10\nv_add_u32 v12, s34, v1')
    a('v_lshlrev_b32 v13, 3, v0')
    a.label('F_loop')
    a(f's_lshl_b32 s24, s21, 2\ns_add_u32 s24, s24, s16\ns_lshl_b32 s25, s24, 2\ns_add_u32 s25, s25, {HFLAG}')
    a(f's_mul_i32 s23, s24, {SEGB}\ns_add_u32 s23, s23, {H}')
    wait_flags(a, 's25', 1)
    gemm(a, False, 's23', 'sc1')
    for t in range(7):
        for qt in range(2):
            a(f'ds_write_b128 v7, {v(A(t,qt),4)} offset:{1024*(2*t+qt)}')
    a(f's_lshl_b32 s25, s21, 2\ns_add_u32 s25, s25, s22\ns_lshl_b32 s25, s25, 2\ns_add_u32 s25, s25, {FFLAG}')
    a(f's_mul_i32 s24, s21, {SEGB}\ns_add_u32 s24, s24, {F}\ns_mul_i32 s33, s22, 7168\ns_add_u32 s24, s24, s33\ns_lshl_b32 s33, s16, 9\ns_add_u32 s24, s24, s33')
    a('s_waitcnt lgkmcnt(0)\ns_barrier')
    for k in range(4):
        if k == 3: a('s_cmp_lt_u32 s16, 2\ns_cbranch_scc0 F_skip')
        for p in range(4):
            a(f'ds_read_b128 {v(RING+4*p,4)}, v12 offset:{4096*k + 14336*p}')
        a('s_waitcnt lgkmcnt(0)')
        for r in range(4):
            a(f'v_add_f32 {v(RING+r)}, {v(RING+r)}, {v(RING+4+r)}\nv_add_f32 {v(RING+8+r)}, {v(RING+8+r)}, {v(RING+12+r)}\nv_add_f32 {v(RING+r)}, {v(RING+r)}, {v(RING+8+r)}')
        q = RING + 16 + 2*k
        a(f'v_cvt_pk_bf16_f32 {v(q)}, {v(RING)}, {v(RING+1)}\nv_cvt_pk_bf16_f32 {v(q+1)}, {v(RING+2)}, {v(RING+3)}')
        if k == 2: a('s_add_u32 s24, s24, 4096')
        a(f'buffer_store_dwordx2 {v(q,2)}, v13, {SRD}, s24 offen offset:{2048*(k % 2)} sc1')
    a.label('F_skip')
    flag_store(a, 's25')
    loop_end(a, 'F_loop')

def allmax_chain(a, t, regs):
    regs = list(regs)
    a(f'v_max3_u32 {v(t)}, {v(regs[0])}, {v(regs[1])}, {v(regs[2])}')
    k = 3
    while k + 1 < len(regs):
        a(f'v_max3_u32 {v(t)}, {v(t)}, {v(regs[k])}, {v(regs[k+1])}'); k += 2
    if k < len(regs): a(f'v_max_u32 {v(t)}, {v(t)}, {v(regs[k])}')

def red45(a, x, t, op):
    a(f'v_mov_b32 {v(t)}, {v(x)}\nv_permlane16_swap_b32 {v(x)}, {v(t)}\n{op} {v(x)}, {v(x)}, {v(t)}')
    a(f'v_mov_b32 {v(t)}, {v(x)}\nv_permlane32_swap_b32 {v(x)}, {v(t)}\n{op} {v(x)}, {v(x)}, {v(t)}')

CEXP = 0x3db8aa3b

def role_P(a, opts):
    a.label('role_P')
    a('s_sub_u32 s27, s17, 96\ns_lshr_b32 s22, s27, 2\ns_and_b32 s21, s27, 3\ns_mov_b32 s20, s22')
    setup(a, True, None)
    a('v_and_b32 v7, 7, v4\nv_lshlrev_b32 v7, 4, v7\nv_lshl_add_u32 v7, v3, 7, v7')
    a('s_mul_i32 s34, s16, 5120\nv_add_u32 v12, s34, v1')
    a('s_lshl_b32 s34, s16, 10\nv_add_u32 v13, s34, v1\nv_mov_b32 v14, v1')
    a('s_lshl_b32 s34, s16, 4\nv_lshlrev_b32 v15, 2, v3\nv_sub_u32 v15, v4, v15\nv_add_u32 v15, s34, v15')
    a('v_lshlrev_b32 v16, 4, v4\nv_lshl_add_u32 v16, v3, 3, v16\nv_mov_b32 v17, 0x80000000')
    a('s_mov_b32 s36, -1\ns_mov_b32 s37, 0\nv_cndmask_b32 v16, v17, v16, s[36:37]')
    a('v_mov_b32 v18, 0xceabfb8f')
    S00, S01, S11, M0, M1 = A(1,0), A(1,1), A(3,0), A(3,1), A(5,0)
    def ring(p, kt): return RING + 4*((20 + 2*p + kt) % 8)
    def TB(p, qt): return A(2*p, qt)
    a.label('P_loop')
    a(f's_mul_i32 s23, s21, {SEGB}\ns_add_u32 s23, s23, {XN}')
    gemm(a, False, 's23')
    for p in range(3):
        for qt in range(2): pack2(a, TB(p,qt), A(2*p,qt), A(2*p+1,qt))
    a('s_cmp_eq_u32 s29, 0\ns_cbranch_scc0 P_odd')
    for qt in range(2):
        q = A(6, qt)
        a(f'v_cvt_pk_bf16_f32 {v(q)}, {v(q)}, {v(q+1)}\nv_cvt_pk_bf16_f32 {v(q+1)}, {v(q+2)}, {v(q+3)}\nv_mov_b32 {v(q+2)}, 0\nv_mov_b32 {v(q+3)}, 0')
    a('s_branch P_join')
    a.label('P_odd')
    for qt in range(2):
        q = A(6, qt)
        a(f'v_cvt_pk_bf16_f32 {v(q+3)}, {v(q+2)}, {v(q+3)}\nv_cvt_pk_bf16_f32 {v(q+2)}, {v(q)}, {v(q+1)}\nv_mov_b32 {v(q)}, 0\nv_mov_b32 {v(q+1)}, 0')
    a.label('P_join')
    a('s_nop 1')
    for p in range(4):
        for d, kt, qt in ((S00,0,0), (S01,0,1), (S11,1,1)):
            c = '0' if p == 0 else v(d,4)
            a(f'v_mfma_f32_16x16x32_bf16 {v(d,4)}, {v(ring(p,kt),4)}, {v(TB(p,qt),4)}, {c}')
    a(f's_mul_i32 s24, s21, {MMS}\ns_add_u32 s24, s24, {MM + 7168}')
    for p in range(4):
        a(f's_lshr_b32 s33, s{SK+10+p}, 2\ns_add_u32 s{72+p}, s33, s24')
    a.label('P_poll')
    for p in range(4):
        a(f'buffer_load_dwordx4 {v(RING+4*p,4)}, v7, {SRD}, s{72+p} offen sc1')
    a('s_waitcnt vmcnt(0)')
    allmax_chain(a, 8, range(RING, RING+16))
    a('v_cmp_eq_u32 vcc, -1, v8\ns_cbranch_vccz P_got')
    timeout(a, 'P_poll', 1)
    a.label('P_got')
    for p in range(4):
        for d, qt in ((M0,0), (M1,1)):
            c = '0' if p == 0 else v(d,4)
            a(f'v_mfma_f32_16x16x32_bf16 {v(d,4)}, {v(RING+4*p,4)}, {v(TB(p,qt),4)}, {c}')
    for k, d in enumerate((S00, S01, S11, M0, M1)):
        a(f'ds_write_b128 v12, {v(d,4)} offset:{1024*k}')
    a('v_xor_b32 v12, 0x8000, v12')
    a('s_waitcnt lgkmcnt(0)\ns_barrier')
    a('s_cmp_lt_u32 s16, 2\ns_cbranch_scc0 P_next')
    R = RING
    for k, (ad, off) in enumerate((('v13', 0), ('v14', 2048), ('v13', 3072))):
        for p in range(4):
            a(f'ds_read_b128 {v(R + 16*k + 4*p, 4)}, {ad} offset:{off + 5120*p}')
    a(f's_mul_i32 s24, s21, {PTS}\ns_add_u32 s24, s24, {PT}\ns_lshr_b32 s25, s22, 2\ns_lshl_b32 s25, s25, 1\ns_add_u32 s25, s25, s16\ns_lshl_b32 s25, s25, 2\ns_and_b32 s33, s22, 3\ns_add_u32 s25, s25, s33\ns_lshl_b32 s25, s25, 8\ns_add_u32 s25, s25, s24\ns_add_u32 s25, s25, 32768')
    a('s_lshl_b32 s33, s22, 1\ns_add_u32 s33, s33, s16\ns_lshl_b32 s33, s33, 10\ns_add_u32 s24, s24, s33')
    for k in range(3):
        a(f's_waitcnt lgkmcnt({8 - 4*k})')
        b = R + 16*k
        for r in range(4):
            a(f'v_add_f32 {v(b+r)}, {v(b+r)}, {v(b+4+r)}\nv_add_f32 {v(b+8+r)}, {v(b+8+r)}, {v(b+12+r)}\nv_add_f32 {v(b+r)}, {v(b+r)}, {v(b+8+r)}')
        if k < 2:
            for r in range(4):
                a(f'v_cmp_le_i32 vcc, {16*k + r}, v15\nv_cndmask_b32 {v(b+r)}, v18, {v(b+r)}, vcc')
    vals = [R + 16*k + r for k in range(3) for r in range(4)]
    a(f'v_max3_f32 v8, {v(vals[0])}, {v(vals[1])}, {v(vals[2])}')
    for k in range(3, 11, 2): a(f'v_max3_f32 v8, v8, {v(vals[k])}, {v(vals[k+1])}')
    a(f'v_max_f32 v8, v8, {v(vals[11])}')
    red45(a, 8, 9, 'v_max_f32')
    for x in vals: a(f'v_sub_f32 {v(x)}, {v(x)}, v8')
    for x in vals: a(f'v_exp_f32 {v(x)}, {v(x)}')
    a(f'v_add_f32 v10, {v(vals[8])}, {v(vals[9])}\nv_add_f32 v11, {v(vals[10])}, {v(vals[11])}\nv_add_f32 v10, v10, v11\nv_cndmask_b32 v10, 0, v10, s[36:37]')
    for x in vals[:8]: a(f'v_add_f32 v10, v10, {v(x)}')
    red45(a, 10, 9, 'v_add_f32')
    a('v_rcp_f32 v10, v10')
    for x in vals: a(f'v_mul_f32 {v(x)}, {v(x)}, v10')
    pack2(a, R+4, R, R+16)
    a(f'v_cvt_pk_bf16_f32 {v(R+8)}, {v(R+32)}, {v(R+33)}\nv_cvt_pk_bf16_f32 {v(R+9)}, {v(R+34)}, {v(R+35)}')
    for k in range(6): a(f'v_min_u32 {v(R+4+k)}, -2, {v(R+4+k)}')
    a(f'buffer_store_dwordx4 {v(R+4,4)}, v1, {SRD}, s24 offen sc1')
    a(f'buffer_store_dwordx2 {v(R+8,2)}, v16, {SRD}, s25 offen sc1')
    a.label('P_next')
    a('v_xor_b32 v13, 0x8000, v13\nv_xor_b32 v14, 0x8000, v14')
    loop_end(a, 'P_loop')

def role_O(a, opts):
    a.label('role_O')
    a('s_cmp_lt_u32 s27, 14\ns_cselect_b32 s28, 0, 14\ns_cselect_b32 s21, 0, 1\ns_sub_u32 s22, s27, s28')
    a('s_sub_u32 s26, s26, 6\ns_lshl_b32 s26, s26, 1\ns_add_u32 s21, s21, s26')
    a('v_lshlrev_b32 v1, 4, v0\nv_lshrrev_b32 v3, 4, v0\nv_and_b32 v4, 15, v0\nv_and_b32 v2, 31, v0\nv_lshlrev_b32 v2, 4, v2')
    a('s_and_b32 s28, s16, 1\ns_lshr_b32 s29, s16, 1')
    a('s_lshl_b32 s30, s28, 4\nv_add_u32 v7, s30, v4\nv_mul_u32_u24 v7, 896, v7\nv_lshl_add_u32 v7, v3, 3, v7')
    a('s_lshl_b32 s30, s22, 6\ns_lshl_b32 s31, s29, 5\ns_add_u32 s30, s30, s31\nv_add_u32 v7, s30, v7')
    a('v_lshlrev_b32 v13, 3, v0')
    a('s_lshl_b32 s30, s16, 12\nv_add_u32 v14, s30, v1')
    a('s_lshl_b32 s30, s29, 1\ns_add_u32 s30, s30, s28\ns_lshl_b32 s30, s30, 10\nv_add_u32 v15, s30, v1')
    VQ, GQ, PQ, PMQ, OA = 32, 64, 80, 112, 128
    a.label('O_loop')
    a(f's_lshl_b32 s24, s21, 6\ns_lshl_b32 s25, s16, 4\ns_add_u32 s24, s24, s25\ns_add_u32 s24, s24, {VFLAG}')
    wait_flags(a, 's24', 4, 8)
    a(f's_lshl_b32 s24, s21, 4\ns_lshl_b32 s25, s16, 2\ns_add_u32 s24, s24, s25\ns_mul_i32 s24, s24, {SEGB}\ns_lshl_b32 s25, s22, 11\ns_add_u32 s24, s24, s25\ns_add_u32 s24, s24, {V}')
    for hh in range(4):
        for ct in range(2):
            a(f'buffer_load_dwordx4 {v(VQ + 8*hh + 4*ct, 4)}, v1, {SRD}, s24 offen offset:{1024*ct} sc1')
        a(f's_add_u32 s24, s24, {SEGB}')
    a(f's_mul_i32 s34, s21, {SEGB}')
    a('buffer_load_dwordx2 v[16:17], v7, s[8:11], s34 offen')
    a(f's_lshl_b32 s24, s21, 4\ns_add_u32 s24, s24, {FFLAG}')
    wait_flags(a, 's24', 4, 8)
    a(f's_lshl_b32 s24, s22, 1\ns_add_u32 s24, s24, s29\ns_lshl_b32 s24, s24, 1\ns_add_u32 s24, s24, s28\ns_lshl_b32 s24, s24, 9\ns_add_u32 s24, s24, s34\ns_add_u32 s24, s24, {F}')
    a(f'buffer_load_dwordx2 v[18:19], v13, {SRD}, s24 offen sc1')
    a(f's_mul_i32 s24, s21, {PTS}\ns_add_u32 s24, s24, {PT}\ns_lshl_b32 s25, s16, 11\ns_add_u32 s25, s25, s24\ns_add_u32 s25, s25, 32768')
    a('s_lshl_b32 s33, s16, 13\ns_add_u32 s24, s24, s33\ns_add_u32 s35, s24, 4096')
    a.label('O_poll')
    for hh in range(4):
        for qt in range(2):
            a(f'buffer_load_dwordx4 {v(PQ + 8*hh + 4*qt, 4)}, v1, {SRD}, {"s24" if hh < 2 else "s35"} offen offset:{2048*(hh % 2) + 1024*qt} sc1')
    for qt in range(2):
        a(f'buffer_load_dwordx4 {v(PMQ + 4*qt, 4)}, v1, {SRD}, s25 offen offset:{1024*qt} sc1')
    a('s_waitcnt vmcnt(0)')
    allmax_chain(a, 8, range(PQ, PQ+40))
    a('v_cmp_eq_u32 vcc, -1, v8\ns_cbranch_vccz O_got')
    timeout(a, 'O_poll', 4)
    a.label('O_got')
    for ct in range(2):
        for qt in range(2):
            d = v(OA + 8*ct + 4*qt, 4)
            for hh in range(4):
                a(f'v_mfma_f32_16x16x32_bf16 {d}, {v(VQ + 8*hh + 4*ct, 4)}, {v(PQ + 8*hh + 4*qt, 4)}, {"0" if hh == 0 else d}')
    a(f's_lshl_b32 s24, s21, 6\ns_lshl_b32 s25, s16, 4\ns_add_u32 s24, s24, s25\ns_add_u32 s24, s24, {GFLAG}')
    wait_flags(a, 's24', 4, 1)
    a(f's_mul_i32 s24, s21, {GSEG}\ns_lshl_b32 s25, s22, 13\ns_add_u32 s24, s24, s25\ns_lshl_b32 s25, s16, 10\ns_add_u32 s24, s24, s25\ns_add_u32 s24, s24, {G}\ns_add_u32 s25, s24, 4096')
    for ct in range(2):
        a(f'buffer_load_dwordx4 {v(GQ + 4*ct, 4)}, v1, {SRD}, {"s24" if ct == 0 else "s25"} offen sc1')
    a('s_waitcnt vmcnt(0)')
    for ct in range(2):
        for qt in range(2):
            d = v(OA + 8*ct + 4*qt, 4)
            a(f'v_mfma_f32_16x16x32_bf16 {d}, {v(GQ + 4*ct, 4)}, {v(PMQ + 4*qt, 4)}, {d}')
    for k in range(4):
        a(f'ds_write_b128 v14, {v(OA + 4*k, 4)} offset:{1024*k}')
    a('v_xor_b32 v14, 0x4000, v14\ns_waitcnt lgkmcnt(0)\ns_barrier')
    for p in range(4):
        a(f'ds_read_b128 {v(VQ + 4*p, 4)}, v15 offset:{4096*p}')
    a('v_xor_b32 v15, 0x4000, v15\ns_mov_b32 s33, 0xffff0000')
    a('v_lshlrev_b32 v20, 16, v16\nv_and_b32 v21, s33, v16\nv_lshlrev_b32 v22, 16, v17\nv_and_b32 v23, s33, v17')
    a('v_lshlrev_b32 v24, 16, v18\nv_and_b32 v25, s33, v18\nv_lshlrev_b32 v26, 16, v19\nv_and_b32 v27, s33, v19')
    for r in range(4): a(f'v_add_f32 {v(20+r)}, {v(20+r)}, {v(24+r)}')
    a('s_waitcnt lgkmcnt(0)')
    for r in range(4):
        a(f'v_add_f32 {v(VQ+r)}, {v(VQ+r)}, {v(VQ+4+r)}\nv_add_f32 {v(VQ+8+r)}, {v(VQ+8+r)}, {v(VQ+12+r)}\nv_add_f32 {v(VQ+r)}, {v(VQ+r)}, {v(VQ+8+r)}\nv_add_f32 {v(20+r)}, {v(20+r)}, {v(VQ+r)}')
    a('v_cvt_pk_bf16_f32 v28, v20, v21\nv_cvt_pk_bf16_f32 v29, v22, v23')
    a('buffer_store_dwordx2 v[28:29], v7, s[12:15], s34 offen')
    loop_end(a, 'O_loop')
```

```python
import sys, importlib
sys.path.insert(0, 'gen')
from asmlib import *
import prep
NAME = 'parallel_sum__memory_aug_recurrent_mem_tr__dense_activation_silu__prompt'
def kd(name, vg, off):
    return f'''.p2align 6
.amdhsa_kernel {name}
  .amdhsa_next_free_vgpr {vg}
  .amdhsa_next_free_sgpr 102
  .amdhsa_accum_offset {off}
  .amdhsa_group_segment_fixed_size 0
  .amdhsa_kernarg_size 104
  .amdhsa_user_sgpr_count 2
  .amdhsa_user_sgpr_kernarg_segment_ptr 1
  .amdhsa_system_sgpr_workgroup_id_x 1
.end_amdhsa_kernel'''
def build(opts=None, with_main=True):
    opts = opts or {}
    ref = open(f'cdna_kernels/{NAME}.s.ref').read().split('\n')
    head = [l for l in ref if l.startswith(';') and '@launch' not in l and 'Override' not in l and 'grid=ceil' not in l]
    head.append(f'; @launch kernel=prep_kernel grid=(256,1,1) block=(512,1,1) lds={prep.PREP_LDS}')
    a = Asm()
    prep.gen_prep(a, 'prep_kernel')
    kds = [kd('prep_kernel', 176, 176)]
    if with_main:
        import mainrole
        head.append(f'; @launch kernel=main_kernel grid=(256,1,1) block=(256,1,1) lds={mainrole.MAIN_LDS}')
        mainrole.gen_main(a, 'main_kernel', opts)
        kds.append(kd('main_kernel', 512, 256))
        head += mainrole.HEADER
    if opts.get('stamp'):
        from layout import DBG
        i0 = a.lines.index('prep_kernel:'); i1 = a.lines.index('main_kernel:'); i2 = a.lines.index('role_A:')
        L = a.lines
        pre = [('s_branch prep_exit' if l == 's_endpgm' else l) for l in L[i0:i1-3]]
        k = pre.index('prep_end:'); pre[k+1] = 's_endpgm'
        pre.insert(3, 's_memrealtime s[94:95]')
        def ex(lab, idx, base):
            return [lab + ':', 's_memrealtime s[96:97]', 's_waitcnt lgkmcnt(0)', 'v_mov_b32 v2, s94', 'v_mov_b32 v3, s96', 'v_mov_b32 v4, s98', 'v_mov_b32 v5, s99', 'v_mov_b32 v1, 0',
                    f's_lshl_b32 s92, {idx}, 4', f's_add_u32 s92, s92, {base}', 's_mov_b64 exec, 1', 'buffer_store_dwordx4 v[2:5], v1, s[4:7], s92 offen', 's_endpgm']
        pre += ['prep_exit:', 's_lshl_b32 s93, s2, 3', 's_add_u32 s93, s93, s3'] + ex('prep_exit2', 's93', DBG + 0x100000)
        post = [('s_branch main_exit' if l == 's_endpgm' else l) for l in L[i2:]]
        post += ['main_exit:', 's_lshl_b32 s93, s17, 2', 's_add_u32 s93, s93, s16'] + ex('main_exit2', 's93', DBG + 0x110000)
        a.lines = L[:i0] + pre + L[i1-3:i2] + post
    body = fix_hazards(a.lines)
    txt = '\n'.join(head) + '\n.amdgcn_target "amdgcn-amd-amdhsa--gfx950"\n.text\n'
    txt += '\n'.join(('' if (l.endswith(':') or l.startswith('.')) else '    ') + l for l in body)
    txt += '\n.section .rodata,"a"\n' + '\n'.join(kds) + '\n'
    return txt
if __name__ == '__main__':
    out = sys.argv[1] if len(sys.argv) > 1 else f'cdna_kernels/{NAME}.s'
    opts = dict(kv.split('=') for kv in sys.argv[2:])
    opts = {k: int(x) for k, x in opts.items()}
    open(out, 'w').write(build(opts, with_main=not opts.get('preponly')))
```

```python
import sys, importlib
sys.path.insert(0, 'gen')
from asmlib import *
import prep
NAME = 'parallel_sum__memory_aug_recurrent_mem_tr__dense_activation_silu__prompt'
def kd(name, vg, off):
    return f'''.p2align 6
.amdhsa_kernel {name}
  .amdhsa_next_free_vgpr {vg}
  .amdhsa_next_free_sgpr 102
  .amdhsa_accum_offset {off}
  .amdhsa_group_segment_fixed_size 0
  .amdhsa_kernarg_size 104
  .amdhsa_user_sgpr_count 2
  .amdhsa_user_sgpr_kernarg_segment_ptr 1
  .amdhsa_system_sgpr_workgroup_id_x 1
.end_amdhsa_kernel'''
def build(opts=None, with_main=True):
    opts = opts or {}
    ref = open(f'cdna_kernels/{NAME}.s.ref').read().split('\n')
    head = [l for l in ref if l.startswith(';') and '@launch' not in l and 'Override' not in l and 'grid=ceil' not in l]
    head.append(f'; @launch kernel=prep_kernel grid=(256,1,1) block=(512,1,1) lds={prep.PREP_LDS}')
    a = Asm()
    prep.gen_prep(a, 'prep_kernel')
    kds = [kd('prep_kernel', 176, 176)]
    if with_main:
        import mainrole
        head.append(f'; @launch kernel=main_kernel grid=(256,1,1) block=(256,1,1) lds={mainrole.MAIN_LDS}')
        mainrole.gen_main(a, 'main_kernel', opts)
        kds.append(kd('main_kernel', 512, 256))
        head += mainrole.HEADER
    if opts.get('stamp'):
        from layout import DBG
        i0 = a.lines.index('prep_kernel:'); i1 = a.lines.index('main_kernel:'); i2 = a.lines.index('role_A:')
        L = a.lines
        pre = [('s_branch prep_exit' if l == 's_endpgm' else l) for l in L[i0:i1-3]]
        k = pre.index('prep_end:'); pre[k+1] = 's_endpgm'
        pre.insert(3, 's_memrealtime s[94:95]')
        def ex(lab, idx, base):
            return [lab + ':', 's_memrealtime s[96:97]', 's_waitcnt lgkmcnt(0)', 'v_mov_b32 v2, s94', 'v_mov_b32 v3, s96', 'v_mov_b32 v4, s98', 'v_mov_b32 v5, s99', 'v_mov_b32 v1, 0',
                    f's_lshl_b32 s92, {idx}, 4', f's_add_u32 s92, s92, {base}', 's_mov_b64 exec, 1', 'buffer_store_dwordx4 v[2:5], v1, s[4:7], s92 offen', 's_endpgm']
        pre += ['prep_exit:', 's_lshl_b32 s93, s2, 3', 's_add_u32 s93, s93, s3'] + ex('prep_exit2', 's93', DBG + 0x100000)
        post = [('s_branch main_exit' if l == 's_endpgm' else l) for l in L[i2:]]
        post += ['main_exit:', 's_lshl_b32 s93, s17, 2', 's_add_u32 s93, s93, s16'] + ex('main_exit2', 's93', DBG + 0x110000)
        if opts.get('dbgout'):
            k = post.index('main_exit2:')
            post[k+3:k+3] = f'''s_load_dwordx2 s[40:41], s[0:1], 88
v_mov_b32 v1, 0
s_mov_b32 s42, {DBG + 0x100000}
buffer_load_dwordx2 v[2:3], v1, s[4:7], s42 offen sc1
s_waitcnt vmcnt(0) lgkmcnt(0)
s_sub_u32 s40, s40, 0
s_subb_u32 s41, s41, 0
s_and_b32 s41, s41, 0xffff
s_mov_b32 s42, 64
s_mov_b32 s43, 0x20000
v_sub_u32 v8, v3, v2
v_sub_u32 v9, s94, v2
v_sub_u32 v10, s98, v2
v_sub_u32 v11, s96, v2
s_cmp_eq_u32 s93, 0
s_cselect_b32 s44, 0, 64
s_mov_b64 exec, 1
buffer_store_dwordx4 v[8:11], v1, s[40:43], s44 offen
s_cmp_eq_u32 s93, 64
s_cselect_b32 s44, 16, 64
buffer_store_dwordx4 v[8:11], v1, s[40:43], s44 offen
s_cmp_eq_u32 s93, 128
s_cselect_b32 s44, 32, 64
buffer_store_dwordx4 v[8:11], v1, s[40:43], s44 offen
s_cmp_eq_u32 s93, {4*251}
s_cselect_b32 s44, 48, 64
buffer_store_dwordx4 v[8:11], v1, s[40:43], s44 offen
s_mov_b64 exec, -1'''.split('\n')
        a.lines = L[:i0] + pre + L[i1-3:i2] + post
    body = fix_hazards(a.lines)
    txt = '\n'.join(head) + '\n.amdgcn_target "amdgcn-amd-amdhsa--gfx950"\n.text\n'
    txt += '\n'.join(('' if (l.endswith(':') or l.startswith('.')) else '    ') + l for l in body)
    txt += '\n.section .rodata,"a"\n' + '\n'.join(kds) + '\n'
    return txt
if __name__ == '__main__':
    out = sys.argv[1] if len(sys.argv) > 1 else f'cdna_kernels/{NAME}.s'
    opts = dict(kv.split('=') for kv in sys.argv[2:])
    opts = {k: int(x) for k, x in opts.items()}
    open(out, 'w').write(build(opts, with_main=not opts.get('preponly')))
```
